```python
import torch

def _softmax(x, axis=-1):
    return torch.softmax(x, dim=axis)
def _gelu(x):
    return torch.nn.functional.gelu(x, approximate="tanh")
def _silu(x):
    return torch.nn.functional.silu(x)
def _sigmoid(x):
    return torch.sigmoid(x)
def _layernorm(x, axis=-1, eps=1e-5):
    m = x.mean(dim=axis, keepdim=True)
    v = x.var(dim=axis, keepdim=True, unbiased=False)
    return (x - m) / torch.sqrt(v + eps)
def _scatter_add(tgt, idx, src, axis=0):
    return tgt.clone().index_add_(axis, idx, src)
def _segment_sum(src, seg, n):
    out = torch.zeros((n,) + src.shape[1:], dtype=src.dtype)
    return out.index_add_(0, seg, src)
def _pad(x, pw):
    flat = tuple(v for pair in reversed(pw) for v in pair)
    return torch.nn.functional.pad(x, flat)

kernel_name = 'interleave_layers__linear_attn_block__glu_gated_geglu__prompt'

def setup_inputs():

    _w = (lambda a: (lambda t: t.to(torch.bfloat16) if t.is_floating_point() else t)(torch.as_tensor(a)))
    def _A_setup():
        B, S, D = 1, 2048, 576
        return {
            "x": _w((lambda *s: torch.randn(*s, dtype=torch.bfloat16) * 0.05)(B, S, D)),
            "wqkv": _w((lambda *s: torch.randn(*s, dtype=torch.bfloat16) * 0.05)(D, 3 * D)),
            "wo": _w((lambda *s: torch.randn(*s, dtype=torch.bfloat16) * 0.05)(D, D)),
        }
    _A_in = _A_setup()

    def _B_setup():
        B, S, Dm, Df = 1, 2048, 576, 4608
        return {
            "x": _w((lambda *s: torch.randn(*s, dtype=torch.bfloat16) * 0.05)(B, S, Dm)),
            "w_gate": _w((lambda *s: torch.randn(*s, dtype=torch.bfloat16) * 0.8)(Dm, Df) * (Dm ** -0.5)),
            "w_up": _w((lambda *s: torch.randn(*s, dtype=torch.bfloat16) * 0.8)(Dm, Df) * (Dm ** -0.5)),
            "w_down": _w((lambda *s: torch.randn(*s, dtype=torch.bfloat16) * 0.8)(Df, Dm) * (Df ** -0.5)),
        }
    _B_in = _B_setup()

    return {
        "A_x": _A_in["x"],
        "A_wqkv": _A_in["wqkv"],
        "A_wo": _A_in["wo"],
        "B_x": _B_in["x"],
        "B_w_gate": _B_in["w_gate"],
        "B_w_up": _B_in["w_up"],
        "B_w_down": _B_in["w_down"],
    }

def reference(A_x, A_wqkv, A_wo, B_x, B_w_gate, B_w_up, B_w_down):
    def _A_ref(x, wqkv, wo):
        B, S, D = x.shape
        H = 32; Dh = D // H
        qkv = (lambda x, *d: x.permute(*d))((x @ wqkv).reshape(B, S, 3, H, Dh), 2, 0, 3, 1, 4)
        q, k, v = qkv[0], qkv[1], qkv[2]
        phi = lambda t: torch.where(t > 0, t + 1, torch.exp(t)) + 1e-6
        pq, pk = phi(q), phi(k)
        kv = torch.einsum("bhsd,bhse->bhde", pk, v)
        z = torch.einsum("bhsd->bhd", pk)
        num = torch.einsum("bhqd,bhde->bhqe", pq, kv)
        den = torch.einsum("bhqd,bhd->bhq", pq, z)[..., None] + 1e-6
        o = num / den
        return (lambda x, *d: x.permute(*d))(o, 0, 2, 1, 3).reshape(B, S, D) @ wo

    def _B_ref(x, w_gate, w_up, w_down):
        g = torch.einsum("bsd,df->bsf", x, w_gate)
        u = torch.einsum("bsd,df->bsf", x, w_up)
        h = _gelu(g) * u
        return torch.einsum("bsf,fd->bsd", h, w_down)

    x = A_x
    x = x + _A_ref(_layernorm(x, axis=-1), A_wqkv, A_wo)
    x = x + _B_ref(_layernorm(x, axis=-1), B_w_gate, B_w_up, B_w_down)
    x = x + _A_ref(_layernorm(x, axis=-1), A_wqkv, A_wo)
    x = x + _B_ref(_layernorm(x, axis=-1), B_w_gate, B_w_up, B_w_down)
    return x
```

```python
class Asm:
    def __init__(self):
        self.lines = []
    def __call__(self, s=""):
        for l in s.split("\n"):
            self.lines.append(l)
    def ext(self, lst):
        for l in lst:
            self(l)
    def text(self):
        return "\n".join(self.lines) + "\n"

def kernel_header(name):
    return f".globl {name}\n.p2align 8\n.type {name},@function\n{name}:"

def kernel_desc(name, vgpr, accum, sgpr=102):
    return f""".amdhsa_kernel {name}
  .amdhsa_next_free_vgpr {vgpr}
  .amdhsa_next_free_sgpr {sgpr}
  .amdhsa_accum_offset {accum}
  .amdhsa_group_segment_fixed_size 0
  .amdhsa_kernarg_size 80
  .amdhsa_user_sgpr_count 2
  .amdhsa_user_sgpr_kernarg_segment_ptr 1
  .amdhsa_system_sgpr_workgroup_id_x 1
  .amdhsa_float_denorm_mode_32 3
.end_amdhsa_kernel"""

def make_file(launches, kernels):
    o = []
    for (n, g, b, lds) in launches:
        o.append(f"; @launch kernel={n} grid=({g},1,1) block=({b},1,1) lds={lds}")
    o.append('.amdgcn_target "amdgcn-amd-amdhsa--gfx950"')
    o.append(".text")
    for (n, body, vg, ac, sg) in kernels:
        o.append(kernel_header(n))
        o.append(body)
    o.append('.section .rodata,"a"')
    for (n, body, vg, ac, sg) in kernels:
        o.append(".p2align 6")
        o.append(kernel_desc(n, vg, ac, sg))
    return "\n".join(o) + "\n"
```

```python
WQ = 0x0000000; WQ_P = 129024
WO = 0x0200000
WGU = 0x0300000
WD = 0x0E00000
LB0 = 0x1400000; LBS = 0x2400000
XN = 0; Y1 = 0x240000; PQM = 0x480000; PQL = 0x680000; KV = 0x700000; ST = 0x710000
SSQ = 0x718000; DMU = 0x738000; PP = 0x740000; HH = 0x1100000
KV_P = 2816
ACT = 0x240000
CH = 36864
WS_SIZE = 0x0F000000
OOB = 0x7FFF0000
def dperm(r): return 2 * (r & 7) + (r >> 3)
def wq_base(F, p): return [576, 1152, 0][F >> 1] + 18 * (F & 1) + 36 * p
def wq_col(p, F, r):
    if F < 6: return wq_base(F, p) + dperm(r)
    c = r & 7
    return wq_base(c, p) + 16 + (r >> 3) if c < 6 else None
def wq_frag(F, ks):
    kp, kk = ks >> 1, ks & 1
    if F in (4, 5): return 90 + kp * 4 + (F - 4) * 2 + kk
    return kp * 10 + (4 if F == 6 else F) * 2 + kk
def fcol(tau, r): return 64 * (tau >> 2) + 8 * (r & 7) + 2 * (tau & 3) + (r >> 3)
def ncol(nq, nt, r): return 144 * nq + (32 * (nt >> 1) + 8 * (r >> 2) + 4 * (nt & 1) + (r & 3) if nt < 8 else 128 + r)
def wd_pos(nt, r, q):
    if nt < 8:
        c, j = r >> 2, r & 3
        return 16 * j + ((4 * q + 4 * j + c) & 15)
    a, i = r >> 3, r & 7
    return 8 * i + ((2 * q + a + 4 * ((i >> 1) & 1)) & 7)
def wo_krow(ks, q, e):
    if ks < 16: return 18 * (2 * ks + (e >> 2)) + dperm(4 * q + (e & 3))
    return 18 * (4 * (4 * (ks - 16) + (e >> 1)) + q) + 16 + (e & 1)
```

```python
import re
REG = re.compile(r"\b([vas])\[(\d+):(\d+)\]|\b([vas])(\d+)\b|\b(vcc|exec|m0|scc)\b")
TRANS = ("v_exp_f32", "v_log_f32", "v_rcp_f32", "v_rsq_f32", "v_sqrt_f32", "v_sin_f32", "v_cos_f32", "v_rcp_iflag_f32")

def regs_of(txt):
    out = []
    for m in REG.finditer(txt):
        if m.group(1): out += [m.group(1) + str(i) for i in range(int(m.group(2)), int(m.group(3)) + 1)]
        elif m.group(4): out.append(m.group(4) + m.group(5))
        else: out.append(m.group(6))
    return out

def split_ops(s):
    parts = s.split(None, 1)
    if len(parts) == 1: return parts[0], []
    return parts[0], [x.strip() for x in parts[1].split(",")]

class Ins:
    __slots__ = ("txt", "op", "dst", "src", "kind", "tag", "srcC", "srcAB", "data")
    def __init__(self, txt, tag=None):
        self.txt = txt; self.tag = tag
        self.srcC = set(); self.srcAB = set(); self.data = set()
        s = txt.split(";")[0].strip()
        if not s or s.endswith(":") or s.startswith("."):
            self.op = ""; self.dst = set(); self.src = set(); self.kind = "label" if s.endswith(":") else "dir"; return
        op, ops = split_ops(s)
        self.op = op
        R = [regs_of(o) for o in ops]
        allr = [r for x in R for r in x]
        dst, src = set(), set()
        if op in ("NEED", "WAITTAG", "WAITALL"):
            self.kind = "pseudo"; src = set(allr)
        elif op.startswith("v_mfma"):
            self.kind = "mfma"; dst = set(R[0]); src = set(R[1] + R[2] + R[3]); self.srcC = set(R[3]); self.srcAB = set(R[1] + R[2])
        elif op.startswith(("buffer_", "global_")):
            self.kind = "vmem"
            if op in ("buffer_wbl2", "buffer_inv"): pass
            elif "_load" in op and (re.search(r"\blds\b", s) or "_lds_" in op): src = set(allr) | {"m0"}; self.kind = "dma"
            elif "_load" in op: dst = set(R[0]); src = set(r for x in R[1:] for r in x)
            elif "atomic" in op and re.search(r"\bsc0\b", s):
                dst = set(R[0]); src = set(allr)
            else:
                src = set(allr)
                if op.endswith(("dwordx3", "dwordx4")): self.data = set(R[0] if op.startswith("buffer") else R[1])
        elif op.startswith("ds_"):
            self.kind = "ds"
            if op.startswith(("ds_read", "ds_bpermute", "ds_permute", "ds_swizzle")) or "_rtn" in op:
                dst = set(R[0]); src = set(r for x in R[1:] for r in x)
                if "_d16" in op: src |= dst
            else: src = set(allr)
        elif op.startswith(("s_load", "s_buffer_load", "s_memtime", "s_memrealtime")):
            self.kind = "smem"; dst = set(R[0]); src = set(r for x in R[1:] for r in x)
        elif op.startswith("s_"):
            self.kind = "salu"
            if op.startswith(("s_cmp", "s_bitcmp")): src = set(allr); dst = {"scc"}
            elif op.startswith(("s_cbranch", "s_branch", "s_waitcnt", "s_nop", "s_barrier", "s_endpgm", "s_setprio", "s_sleep")):
                if "vcc" in op: src = {"vcc"}
                if "exec" in op: src = {"exec"}
            else:
                dst = set(R[0]); src = set(r for x in R[1:] for r in x)
                if "saveexec" in op: dst |= {"exec"}; src |= {"exec"}
        elif op.startswith("v_"):
            self.kind = "valu"
            if "permlane" in op and "swap" in op: dst = set(allr); src = set(allr)
            else:
                dst = set(R[0]); src = set(r for x in R[1:] for r in x)
                if op.startswith(("v_add_co", "v_sub_co", "v_addc_co", "v_subb_co", "v_subrev_co")): dst |= set(R[1])
                if op.startswith(("v_fmac", "v_dot2c", "v_pk_fmac", "v_writelane")) or "_dpp" in op or "row_" in s or "quad_perm" in s or "_sdwa" in op: src |= set(R[0])
                if op.startswith("v_cmpx"): dst |= {"exec"}
        else:
            raise ValueError("unknown op: " + txt)
        self.dst, self.src = dst, src
    def is_dpp(self): return "_dpp" in self.op or "row_" in self.txt or "quad_perm" in self.txt
    def passes(self):
        return 8 if "32x32" in self.op else 4

def need_states(p, c):
    n = 0
    pv = p.kind == "valu"; cv = c.kind == "valu"
    pd = p.dst
    if pv:
        vd = {r for r in pd if r[0] in "va" and r != "vcc"}
        sd = {r for r in pd if r[0] == "s" or r == "vcc"}
        if c.kind == "mfma" and vd & c.src: n = max(n, 2)
        if cv and c.is_dpp() and vd & c.src: n = max(n, 2)
        if cv and "permlane" in c.op and vd & c.src: n = max(n, 2)
        if cv and c.op.startswith(("v_readlane", "v_readfirstlane")) and vd & c.src: n = max(n, 1)
        if p.op.startswith(TRANS) and cv and vd & c.src: n = max(n, 1)
        if ("_sdwa" in p.op or "op_sel" in p.txt) and cv and vd & (c.src | c.dst): n = max(n, 1)
        if sd:
            if c.kind in ("vmem", "dma") and sd & c.src: n = max(n, 5)
            if cv and sd & c.src: n = max(n, 4 if c.op.startswith(("v_readlane", "v_writelane")) else 2)
            if c.kind == "salu" and sd & c.src: n = max(n, 2)
        if "exec" in pd:
            if cv and c.is_dpp(): n = max(n, 5)
            if c.kind == "mfma": n = max(n, 4)
            if cv and (c.op.startswith(("v_readlane", "v_readfirstlane", "v_writelane")) or "permlane" in c.op): n = max(n, 4)
    if p.kind == "salu" and "m0" in pd and c.kind == "dma": n = max(n, 1)
    if p.kind == "vmem" and p.data and (p.data & c.dst): n = max(n, 2)
    if p.kind == "mfma":
        ps = p.passes()
        if c.kind == "mfma":
            if pd & c.srcAB: n = max(n, ps + 4)
            if pd & c.srcC and not (pd == c.srcC and c.passes() == ps): n = max(n, ps + 2)
            if pd & c.dst and not (pd == c.dst and c.passes() == ps): n = max(n, ps + 2)
        elif c.kind in ("valu", "vmem", "dma", "ds"):
            if pd & (c.src | c.dst): n = max(n, ps + 4)
            if cv and p.srcC & c.dst: n = max(n, ps - 1)
    return n

class Prog:
    def __init__(self):
        self.ins = []
    def __call__(self, txt, tag=None):
        if isinstance(txt, tuple): txt, tag = txt
        for l in txt.split("\n"):
            self.ins.append(Ins(l, tag))
    def ext(self, lst):
        for l in lst: self(l)
    def finalize(self, verbose=False):
        out = []
        vm = []; lg = []
        nwait = 0
        for i in self.ins:
            if i.kind in ("label", "dir"):
                out.append(i); continue
            if i.op == "s_waitcnt":
                m = re.search(r"vmcnt\((\d+)\)", i.txt)
                if m: vm = vm[len(vm) - int(m.group(1)):] if int(m.group(1)) < len(vm) else vm
                m = re.search(r"lgkmcnt\((\d+)\)", i.txt)
                if m: lg = lg[len(lg) - int(m.group(1)):] if int(m.group(1)) < len(lg) else lg
                out.append(i); continue
            touch = i.src | i.dst
            nv = nl = None
            tags = None
            if i.op == "WAITTAG": tags = set(i.txt.split()[1].split(",")); touch = set()
            for k in range(len(vm) - 1, -1, -1):
                if (vm[k].dst & touch) or (tags and vm[k].tag in tags) or i.op == "WAITALL":
                    nv = len(vm) - 1 - k; break
            for k in range(len(lg) - 1, -1, -1):
                if (lg[k].dst & touch) or (tags and lg[k].tag in tags) or i.op == "WAITALL":
                    nl = len(lg) - 1 - k; break
            if nl is not None and any(x.kind == "smem" for x in lg): nl = 0
            if nv is not None or nl is not None:
                w = "s_waitcnt"
                if nv is not None:
                    nv = min(nv, 63); w += f" vmcnt({nv})"; vm = vm[len(vm) - nv:] if nv else []
                if nl is not None:
                    nl = min(nl, 15); w += f" lgkmcnt({nl})"; lg = lg[len(lg) - nl:] if nl else []
                out.append(Ins(w)); nwait += 1
            if i.kind == "pseudo": continue
            out.append(i)
            if i.kind in ("vmem", "dma"): vm.append(i)
            elif i.kind in ("ds", "smem"): lg.append(i)
        res = []; nnop = 0
        for i in out:
            if i.kind in ("label", "dir"):
                res.append(i); continue
            dist = 0; pad = 0
            for p in reversed(res):
                if p.kind in ("label", "dir"): continue
                if dist >= 20: break
                n = need_states(p, i)
                if n > dist: pad = max(pad, n - dist)
                dist += (int(p.txt.split()[1]) + 1) if p.op == "s_nop" else 1
            if pad:
                res.append(Ins(f"s_nop {pad-1}")); nnop += 1
            res.append(i)
        if verbose: print(f"  instrs {len(res)} waits {nwait} nops {nnop}")
        return "\n".join(x.txt for x in res) + "\n"

def cost(s):
    if isinstance(s, tuple): s = s[0]
    if s.startswith(TRANS): return 2
    return 1

def place(slots, fillers, cap, start=0, end=None):
    n = len(slots); end = n if end is None else end
    fixed = [sum(cost(x) for x in slots[i][2]) + (sum(cost(x) for x in slots[i+1][0]) if i + 1 < n else 0) for i in range(n)]
    total = sum(cost(f) for f in fillers)
    avail = max(1, sum(max(0, cap - fixed[i]) for i in range(start, end)))
    k = 0; used = 0; placed = 0
    for i in range(start, end):
        room = max(0, cap - fixed[i]); used += room
        tgt = total * used / avail
        while k < len(fillers) and cost(fillers[k]) <= room and placed < tgt + 1:
            room -= cost(fillers[k]); placed += cost(fillers[k]); slots[i][2].append(fillers[k]); k += 1
    left = len(fillers) - k
    slots[end - 1][2].extend(fillers[k:])
    return left

def flat(slots):
    out = []
    for pre, m, post in slots: out += list(pre) + [m] + list(post)
    return out
```

```python
STAMP_OFF = 0x0F000000
def stamp_begin(a, s=84):
    a(f"s_memrealtime s[{s}:{s+1}]")
    a(f"s_memtime s[{s+2}:{s+3}]")
    a(f"s_load_dwordx4 s[{s+4}:{s+7}], s[0:1], 64")
    a(f"s_mov_b32 s{s+12}, s2")
    a("s_waitcnt lgkmcnt(0)")
def stamp_end(a, s=84, v=0, tid="v0"):
    a(f"s_memrealtime s[{s+8}:{s+9}]")
    a(f"s_memtime s[{s+10}:{s+11}]")
    a(f"s_lshr_b32 s{s+13}, s{s+4}, 9")
    a(f"s_and_b32 s{s+13}, s{s+13}, 63")
    a(f"s_lshl_b32 s{s+13}, s{s+13}, 10")
    a(f"s_add_u32 s{s+13}, s{s+13}, s{s+12}")
    a(f"s_lshl_b32 s{s+13}, s{s+13}, 5")
    a(f"s_add_u32 s{s+13}, s{s+13}, {STAMP_OFF}")
    a(f"s_getreg_b32 s{s+14}, hwreg(HW_REG_XCC_ID)")
    a("s_waitcnt lgkmcnt(0)")
    a(f"v_cmp_eq_u32 vcc, 0, {tid}")
    a(f"s_and_saveexec_b64 s[{s+4}:{s+5}], vcc")
    a("s_cbranch_execz 99f")
    a(f"v_mov_b32 v{v+8}, s{s+13}")
    a(f"v_mov_b32 v{v}, s{s}"); a(f"v_mov_b32 v{v+1}, s{s+1}")
    a(f"v_mov_b32 v{v+2}, s{s+8}"); a(f"v_mov_b32 v{v+3}, s{s+9}")
    a(f"v_mov_b32 v{v+4}, s{s+2}"); a(f"v_mov_b32 v{v+5}, s{s+10}")
    a(f"v_mov_b32 v{v+6}, s{s+14}"); a(f"v_mov_b32 v{v+7}, 0")
    a(f"global_store_dwordx4 v{v+8}, v[{v}:{v+3}], s[{s+6}:{s+7}]")
    a(f"global_store_dwordx4 v{v+8}, v[{v+4}:{v+7}], s[{s+6}:{s+7}] offset:16")
    a("99:")

def read_stamps(c, nl, nwg):
    import numpy as np
    r = c.read(c.ws, STAMP_OFF, np.uint32, (nl, 1024, 8))
    out = []
    for l in range(nl):
        n = nwg[l] if isinstance(nwg, (list, tuple)) else nwg
        x = r[l, :n].astype(np.int64)
        st = x[:, 0] | (x[:, 1] << 32); en = x[:, 2] | (x[:, 3] << 32)
        clk = (x[:, 5] - x[:, 4]) & 0xFFFFFFFF
        out.append(dict(st=st, en=en, clk=clk, xcc=x[:, 6] & 15))
    return out

def summarize(out):
    import numpy as np
    t0 = out[0]["st"].min()
    s = []
    prev_end = None
    for i, o in enumerate(out):
        a, b = o["st"].min(), o["en"].max()
        ghz = np.median(o["clk"] / np.maximum(o["en"] - o["st"], 1)) / 10
        gap = "" if prev_end is None else " gap %.2f" % ((a - prev_end) / 100)
        s.append("L%d: start %.2f lastStart %.2f firstEnd %.2f end %.2f dur %.2f%s clk med %d max %d (%.2f GHz)" % (
            i, (a - t0) / 100, (o["st"].max() - t0) / 100, (o["en"].min() - t0) / 100, (b - t0) / 100, (b - a) / 100, gap,
            np.median(o["clk"]), o["clk"].max(), ghz))
        prev_end = b
    return "\n".join(s)
```

```python
import sys
from prog import *
from layout import *
from asmlib import make_file
import stamps

STAMP = False
def f2u(x):
    import struct
    return struct.unpack("<I", struct.pack("<f", x))[0]
def hx(x): return "0x%x" % (x & 0xffffffff)
LOG2E = 1.4426950408889634
def vr(b, n=4): return f"v[{b}:{b+n-1}]" if n > 1 else f"v{b}"
def ar(b, n=4): return f"a[{b}:{b+n-1}]" if n > 1 else f"a{b}"
WS = "s[8:11]"

def srd(a, s, ptr, size):
    a(f"s_mov_b32 s{s}, s{ptr}"); a(f"s_mov_b32 s{s+1}, s{ptr+1}"); a(f"s_mov_b32 s{s+2}, {hx(size)}"); a(f"s_mov_b32 s{s+3}, 0x20000")

def begin(a, nwg):
    a(f"s_cmp_ge_u32 s2, {nwg}"); a("s_cbranch_scc1 9f")
    if STAMP: stamps.stamp_begin(a)
    a("s_load_dwordx2 s[4:5], s[0:1], 72")
    a("v_and_b32 v1, 63, v0")
    a("v_lshrrev_b32 v2, 6, v0")
    a("v_lshlrev_b32 v4, 4, v1")
    a("v_readfirstlane_b32 s3, v2")
    srd(a, 8, 4, WS_SIZE)
def end(a):
    if STAMP:
        a("WAITALL"); a("s_barrier"); stamps.stamp_end(a, v=8)
    a("9:"); a("s_endpgm")

def sdiv(a, dst, src, d, rem=None):
    a(f"s_mul_i32 s{dst}, s{src}, {(1 << 20) // d + 1}"); a(f"s_lshr_b32 s{dst}, s{dst}, 20")
    if rem is not None:
        a(f"s_mul_i32 s{rem}, s{dst}, {d}"); a(f"s_sub_u32 s{rem}, s{src}, s{rem}")
def chk_div(d, n):
    m = (1 << 20) // d + 1
    assert all((x * m) >> 20 == x // d and x * m < 2**32 for x in range(n)), (d, n)

def unpack(a, dst, src, n):
    for i in range(n):
        a(f"v_lshlrev_b32 v{dst+2*i}, 16, v{src+i}")
        a(f"v_and_b32 v{dst+2*i+1}, 0xffff0000, v{src+i}")

def ln_stats(a, T, tmp, lds_off):
    s1, s2 = tmp, tmp + 1
    a(f"v_add_f32 v{s1}, v{T}, v{T+1}"); a(f"v_add_f32 v{tmp+2}, v{T+2}, v{T+3}")
    a(f"v_mul_f32 v{s2}, v{T}, v{T}"); a(f"v_mul_f32 v{tmp+3}, v{T+1}, v{T+1}")
    a(f"v_fmac_f32 v{s2}, v{T+2}, v{T+2}"); a(f"v_fmac_f32 v{tmp+3}, v{T+3}, v{T+3}")
    for i in range(4, 24, 2):
        a(f"v_add_f32 v{s1}, v{s1}, v{T+i}"); a(f"v_add_f32 v{tmp+2}, v{tmp+2}, v{T+i+1}")
        a(f"v_fmac_f32 v{s2}, v{T+i}, v{T+i}"); a(f"v_fmac_f32 v{tmp+3}, v{T+i+1}, v{T+i+1}")
    a(f"v_add_f32 v{s1}, v{s1}, v{tmp+2}"); a(f"v_add_f32 v{s2}, v{s2}, v{tmp+3}")
    a(f"v_permlane16_swap_b32 v{s1}, v{s2}")
    a(f"v_add_f32 v{s1}, v{s1}, v{s2}")
    a(f"v_add_f32_dpp v{s1}, v{s1}, v{s1} row_ror:8 row_mask:0xf bank_mask:0xf")
    a(f"v_mov_b32 v{s2}, v{s1}")
    a(f"v_permlane32_swap_b32 v{s1}, v{s2}")
    a(f"v_add_f32 v{s1}, v{s1}, v{s2}")
    a(f"v_and_b32 v{tmp+2}, 7, v1"); a(f"v_lshlrev_b32 v{tmp+2}, 4, v{tmp+2}")
    a(f"v_bfe_u32 v{tmp+3}, v1, 4, 1"); a(f"v_lshl_add_u32 v{tmp+3}, v{tmp+3}, 7, v{tmp+2}")
    a(f"v_lshl_add_u32 v{tmp+3}, s3, 2, v{tmp+3}")
    a(f"ds_write_b32 v{tmp+3}, v{s1} offset:{lds_off}", "lnw")
    a("WAITTAG lnw"); a("s_barrier")
    a(f"ds_read_b128 {vr(tmp+4)}, v{tmp+2} offset:{lds_off}")
    a(f"ds_read_b128 {vr(tmp+8)}, v{tmp+2} offset:{lds_off+128}")
    a(f"v_add_f32 v{s1}, v{tmp+4}, v{tmp+5}"); a(f"v_add_f32 v{s2}, v{tmp+8}, v{tmp+9}")
    a(f"v_add_f32 v{s1}, v{s1}, v{tmp+6}"); a(f"v_add_f32 v{s2}, v{s2}, v{tmp+10}")
    a(f"v_mul_f32 v{s1}, {hx(f2u(1/576))}, v{s1}")
    a(f"v_mul_f32 v{s2}, {hx(f2u(1/576))}, v{s2}")
    a(f"v_fma_f32 v{s2}, -v{s1}, v{s1}, v{s2}")
    a(f"v_max_f32 v{s2}, 0, v{s2}")
    a(f"v_add_f32 v{s2}, {hx(f2u(1e-5))}, v{s2}")

def ln_write(a, T, tmp, out, vaddr, sXN, mu_add, vstaddr, sST):
    m, v = tmp, tmp + 1
    a(f"v_rsq_f32 v{tmp+2}, v{v}")
    a(f"v_sqrt_f32 v{tmp+5}, v{v}")
    if mu_add is not None: a(f"v_add_f32 v{tmp+4}, v{m}, v{mu_add}")
    else: a(f"v_mov_b32 v{tmp+4}, v{m}")
    a(f"v_mul_f32 v{tmp+3}, v{m}, v{tmp+2}")
    for i in range(3):
        for e in range(8): a(f"v_fma_f32 v{T+8*i+e}, v{T+8*i+e}, v{tmp+2}, -v{tmp+3}")
        for e in range(4): a(f"v_cvt_pk_bf16_f32 v{out+4*i+e}, v{T+8*i+2*e}, v{T+8*i+2*e+1}")
        a(f"buffer_store_dwordx4 {vr(out+4*i)}, v{vaddr}, {WS}, s{sXN} offen offset:{2048*i if i < 2 else 0} sc1")
        if i == 1: a(f"s_add_u32 s{sXN}, s{sXN}, 4096")
    a(f"buffer_store_dwordx2 {vr(tmp+4,2)}, v{vstaddr}, {WS}, s{sST} offen sc1")

def tokgroup_addr(a, sG):
    a(f"s_lshr_b32 s20, s{sG}, 1"); a(f"s_mul_i32 s20, s20, {72*256}")
    a(f"s_and_b32 s21, s{sG}, 1"); a("s_lshl_b32 s21, s21, 7"); a("s_add_u32 s20, s20, s21")
    a(f"s_mul_i32 s21, s3, {24*256}"); a("s_add_u32 s20, s20, s21")
    a("s_cmp_eq_u32 s3, 3"); a(f"s_cselect_b32 s20, {hx(OOB)}, s20")
    a("v_and_b32 v7, 7, v1"); a("v_lshrrev_b32 v6, 3, v1"); a("v_lshlrev_b32 v6, 8, v6")
    a("v_lshl_add_u32 v5, v7, 4, v6"); a("v_add_u32 v5, s20, v5")
    a(f"s_lshl_b32 s21, s{sG}, 6"); a("v_lshl_add_u32 v7, v7, 3, s21")
    a(f"v_mov_b32 v6, {hx(OOB)}"); a("v_cmp_gt_u32 vcc, 8, v0"); a("v_cndmask_b32 v6, v6, v7, vcc")

def xcd_split(a, sx, ss):
    a(f"s_and_b32 s{sx}, s2, 7"); a(f"s_lshr_b32 s{ss}, s2, 3")

N_WO, N_LN, N_WQ, N_GU, N_WD = 72, 256, 252, 324, 162
def k0():
    a = Prog(); tot = N_WO + N_LN + N_WQ + N_GU + N_WD
    begin(a, tot)
    a("s_load_dwordx4 s[24:27], s[0:1], 0")
    a("s_load_dwordx2 s[28:29], s[0:1], 16")
    a("s_load_dwordx4 s[32:35], s[0:1], 32")
    a("s_load_dwordx2 s[36:37], s[0:1], 48")
    a("v_and_b32 v2, 7, v1"); a("v_lshrrev_b32 v3, 3, v1")
    a("s_mov_b32 s40, 0x05040100"); a("s_mov_b32 s41, 0x07060302")
    a("WAITALL")
    a(f"s_cmp_lt_u32 s2, {N_WO}"); a("s_cbranch_scc1 L0_wo")
    a(f"s_cmp_lt_u32 s2, {N_WO+N_LN}"); a("s_cbranch_scc1 L0_ln")
    a(f"s_cmp_lt_u32 s2, {N_WO+N_LN+N_WQ}"); a("s_cbranch_scc1 L0_wq")
    a(f"s_cmp_lt_u32 s2, {N_WO+N_LN+N_WQ+N_GU}"); a("s_cbranch_scc1 L0_gu")
    R = 16; O = 48
    def perms(i, nd=4):
        for m in range(4):
            a(f"v_perm_b32 v{O+4*i+m}, v{R+nd*(2*m+1)+(i>>1)}, v{R+nd*(2*m)+(i>>1)}, s{40+(i&1)}")
    a(f"s_sub_u32 s16, s2, {N_WO+N_LN+N_WQ+N_GU}"); a("s_lshl_b32 s16, s16, 2"); a("s_add_u32 s16, s16, s3")
    chk_div(9, 648); chk_div(18, 72)
    sdiv(a, 17, 16, 9, 18)
    a("s_and_b32 s19, s17, 1"); a("s_lshr_b32 s17, s17, 1")
    sdiv(a, 20, 17, 9, 21)
    srd(a, 12, 36, 4608 * 576 * 2)
    a("s_mul_i32 s22, s20, 72"); a("s_mul_i32 s23, s19, 36"); a("s_add_u32 s22, s22, s23"); a("s_add_u32 s22, s22, s21")
    a("v_lshrrev_b32 v5, 1, v3"); a("v_mad_u32_u24 v5, v5, 9, s22")
    a("v_lshrrev_b32 v6, 2, v5"); a("v_lshlrev_b32 v6, 6, v6"); a("v_and_b32 v5, 3, v5"); a("v_lshl_add_u32 v6, v5, 1, v6")
    a("v_and_b32 v5, 1, v3"); a("v_add_u32 v6, v6, v5")
    a("v_mul_u32_u24 v6, 1152, v6")
    a("s_mul_i32 s22, s20, 36"); a("s_add_u32 s22, s22, s21"); a(f"s_mul_i32 s22, s22, {CH}")
    a(f"s_mul_i32 s23, s19, {18*1024}"); a("s_add_u32 s22, s22, s23"); a(f"s_add_u32 s22, s22, {WD}")
    a("v_lshrrev_b32 v7, 2, v3"); a("v_lshlrev_b32 v7, 10, v7")
    a("v_and_b32 v8, 3, v3")
    a("s_cmp_eq_u32 s18, 8"); a("s_cbranch_scc1 L0_wd8")
    a("s_lshr_b32 s30, s18, 1"); a("s_and_b32 s31, s18, 1")
    a("s_mul_i32 s38, s30, 288"); a("s_lshl_b32 s39, s31, 7"); a("s_add_u32 s38, s38, s39")
    a("v_lshl_add_u32 v6, v2, 4, v6")
    for e in range(8):
        a(f"buffer_load_dwordx4 {vr(R+4*e)}, v6, s[12:15], s38 offen"); a(f"s_add_u32 s38, s38, {8*1152}")
    a(f"s_mul_i32 s30, s30, {9*CH}"); a("s_add_u32 s22, s22, s30"); a("s_lshl_b32 s31, s31, 13"); a("s_add_u32 s22, s22, s31")
    a("v_lshrrev_b32 v9, 2, v2"); a("v_lshl_add_u32 v7, v9, 12, v7")
    a("v_and_b32 v9, 3, v2"); a("v_lshl_add_u32 v9, v8, 2, v9")
    for j in range(4):
        a(f"v_add_u32 v{10+j}, {4*j}, v9"); a(f"v_and_b32 v{10+j}, 15, v{10+j}"); a(f"v_lshl_add_u32 v{10+j}, v{10+j}, 4, v7")
    for i in range(8):
        perms(i)
        a(f"buffer_store_dwordx4 {vr(O+4*i)}, v{10+(i&3)}, {WS}, s22 offen offset:{(i>>2)*2048 + (i&3)*256} sc1")
    a("s_branch L0_end")
    a("L0_wd8:")
    a("v_lshrrev_b32 v9, 1, v2"); a("v_and_b32 v10, 1, v2")
    a("v_mul_u32_u24 v11, 288, v9"); a("v_lshl_add_u32 v11, v10, 4, v11"); a("v_add_u32 v6, v6, v11")
    a("s_mov_b32 s38, 256")
    for e in range(8):
        a(f"buffer_load_dwordx4 {vr(R+4*e)}, v6, s[12:15], s38 offen"); a(f"s_add_u32 s38, s38, {8*1152}")
    a(f"s_add_u32 s22, s22, {16*1024}")
    a(f"v_mul_u32_u24 v9, {9*CH}, v9"); a("v_add_u32 v7, v7, v9")
    a("v_lshl_add_u32 v10, v8, 1, v10"); a("v_xor_b32 v11, 4, v10")
    a("v_lshl_add_u32 v10, v10, 4, v7"); a("v_lshl_add_u32 v11, v11, 4, v7")
    for i in range(8):
        perms(i)
        a(f"buffer_store_dwordx4 {vr(O+4*i)}, v{10+((i>>1)&1)}, {WS}, s22 offen offset:{i*128} sc1")
    a("s_branch L0_end")
    a("L0_gu:")
    a(f"s_sub_u32 s16, s2, {N_WO+N_LN+N_WQ}"); a("s_lshl_b32 s16, s16, 2"); a("s_add_u32 s16, s16, s3")
    chk_div(72, 1296)
    sdiv(a, 17, 16, 72, 18)
    a("s_and_b32 s19, s17, 1"); a("s_lshr_b32 s20, s17, 1")
    a("s_cmp_eq_u32 s19, 0"); a("s_cselect_b32 s12, s32, s34"); a("s_cselect_b32 s13, s33, s35")
    a(f"s_mov_b32 s14, {576*4608*2}"); a("s_mov_b32 s15, 0x20000")
    a(f"v_mul_u32_u24 v6, {8*9216}, v3"); a("v_lshl_add_u32 v6, v2, 4, v6")
    a(f"s_mul_i32 s38, s20, {64*9216}"); a("s_lshl_b32 s39, s18, 7"); a("s_add_u32 s38, s38, s39")
    for e in range(8):
        a(f"buffer_load_dwordx4 {vr(R+4*e)}, v6, s[12:15], s38 offen"); a(f"s_add_u32 s38, s38, 9216")
    a("v_lshlrev_b32 v7, 8, v3"); a("v_lshl_add_u32 v7, v2, 4, v7")
    a(f"s_mul_i32 s22, s18, {4*CH}"); a("s_lshl_b32 s23, s17, 11"); a("s_add_u32 s22, s22, s23"); a(f"s_add_u32 s22, s22, {WGU}")
    for i in range(8):
        perms(i)
        a(f"buffer_store_dwordx4 {vr(O+4*i)}, v7, {WS}, s22 offen offset:{(i&1)*128} sc1")
        if i & 1: a(f"s_add_u32 s22, s22, {CH}")
    a("s_branch L0_end")
    a("L0_wq:")
    a(f"s_sub_u32 s16, s2, {N_WO+N_LN}"); a("s_lshl_b32 s16, s16, 2"); a("s_add_u32 s16, s16, s3")
    chk_div(7, 1008); chk_div(16, 144)
    sdiv(a, 17, 16, 7, 18)
    a("s_and_b32 s19, s17, 15"); a("s_lshr_b32 s20, s17, 4")
    srd(a, 12, 26, 576 * 1728 * 2)
    a("s_cmp_lt_u32 s18, 6"); a("s_cselect_b64 vcc, -1, 0")
    a("v_mov_b32 v5, s18"); a("v_cndmask_b32 v5, v2, v5, vcc")
    a("v_lshlrev_b32 v6, 1, v2"); a("v_cndmask_b32 v6, 16, v6, vcc")
    a("v_lshrrev_b32 v7, 1, v5"); a("v_add_u32 v7, 1, v7"); a("v_mul_u32_u24 v8, 576, v7")
    a("v_cmp_gt_u32 vcc, 3, v7"); a("v_cndmask_b32 v8, 0, v8, vcc")
    a("v_and_b32 v9, 1, v5"); a("v_mad_u32_u24 v8, v9, 18, v8"); a("v_add_u32 v6, v6, v8")
    a("v_lshlrev_b32 v6, 1, v6"); a(f"v_mul_u32_u24 v8, {8*3456}, v3"); a("v_add_u32 v6, v6, v8")
    a(f"v_mov_b32 v8, {hx(OOB)}"); a("v_cmp_gt_u32 vcc, 6, v5"); a("v_cndmask_b32 v6, v8, v6, vcc")
    a(f"s_mul_i32 s38, s20, {64*3456}"); a("s_mul_i32 s39, s19, 72"); a("s_add_u32 s38, s38, s39")
    for e in range(8):
        a(f"buffer_load_dword v{R+e}, v6, s[12:15], s38 offen"); a(f"s_add_u32 s38, s38, 3456")
    a("v_lshlrev_b32 v7, 8, v3"); a("v_lshl_add_u32 v7, v2, 4, v7")
    a("s_min_u32 s21, s18, 4"); a("s_lshl_b32 s21, s21, 1"); a("s_mul_i32 s22, s20, 10"); a("s_add_u32 s22, s22, s21")
    a("s_lshl_b32 s23, s20, 1"); a("s_add_u32 s23, s23, s18"); a("s_lshl_b32 s23, s23, 1"); a("s_add_u32 s23, s23, 82")
    a("s_lshr_b32 s21, s18, 1"); a("s_cmp_eq_u32 s21, 2"); a("s_cselect_b32 s22, s23, s22")
    a("s_lshl_b32 s22, s22, 10"); a(f"s_mul_i32 s23, s19, {WQ_P}"); a("s_add_u32 s22, s22, s23")
    if WQ: a(f"s_add_u32 s22, s22, {WQ}")
    for i in range(2):
        perms(i, nd=1)
        a(f"buffer_store_dwordx4 {vr(O+4*i)}, v7, {WS}, s22 offen offset:{i*128} sc1")
    a("s_branch L0_end")
    a("L0_wo:")
    srd(a, 12, 28, 576 * 576 * 2)
    a("s_lshr_b32 s16, s2, 2"); a("s_and_b32 s17, s2, 3")
    a("s_cmp_lt_u32 s16, 16"); a("s_cbranch_scc0 L0_wo_b")
    a("s_mul_i32 s18, s16, 36"); a("s_and_b32 s19, s17, 1"); a("s_lshl_b32 s19, s19, 3"); a("s_add_u32 s18, s18, s19")
    a("s_lshr_b32 s19, s17, 1"); a("s_add_u32 s18, s18, s19")
    for e in range(8): a(f"s_add_u32 s{48+e}, s18, {18*(e>>2) + 2*(e&3)}")
    a("s_branch L0_wo_c")
    a("L0_wo_b:")
    a("s_sub_u32 s18, s16, 16"); a("s_lshl_b32 s18, s18, 4"); a("s_add_u32 s18, s18, s17"); a("s_mul_i32 s18, s18, 18")
    for e in range(8): a(f"s_add_u32 s{48+e}, s18, {72*(e>>1) + 16 + (e&1)}")
    a("L0_wo_c:")
    for e in range(8): a(f"s_mul_i32 s{48+e}, s{48+e}, 1152")
    X = 16
    a("v_and_b32 v5, 15, v0")
    a("v_lshrrev_b32 v6, 2, v5"); a("v_and_b32 v7, 3, v5"); a("v_lshl_add_u32 v6, v6, 3, v7")
    a("v_add_u32 v7, 128, v5")
    a("s_lshl_b32 s20, s16, 10"); a("s_lshl_b32 s21, s17, 8"); a("s_add_u32 s20, s20, s21"); a(f"s_add_u32 s20, s20, {WO}")
    for rd in range(3):
        a("v_lshrrev_b32 v8, 4, v0")
        if rd: a(f"v_add_u32 v8, {16*rd}, v8")
        a("v_mul_u32_u24 v9, 57, v8"); a("v_lshrrev_b32 v9, 9, v9")
        assert all((T * 57) >> 9 == T // 9 for T in range(48))
        a("v_mul_u32_u24 v10, 9, v9"); a("v_sub_u32 v10, v8, v10")
        a("v_lshrrev_b32 v11, 1, v10"); a("v_lshl_add_u32 v11, v11, 5, v6"); a("v_and_b32 v12, 1, v10"); a("v_lshl_add_u32 v11, v12, 2, v11")
        a("v_cmp_gt_u32 vcc, 8, v10"); a("v_cndmask_b32 v11, v7, v11, vcc")
        a("v_mul_u32_u24 v9, 144, v9"); a("v_add_lshl_u32 v11, v9, v11, 1")
        a(f"v_mov_b32 v12, {hx(OOB)}")
        a(f"v_mul_u32_u24 v{13+rd}, {18*1024}, v8"); a(f"v_lshl_add_u32 v{13+rd}, v5, 4, v{13+rd}")
        if rd == 2:
            a("v_cmp_gt_u32 vcc, 36, v8"); a("v_cndmask_b32 v11, v12, v11, vcc")
            a("v_cmp_gt_u32 vcc, 37, v8"); a(f"v_cndmask_b32 v15, v12, v15, vcc")
        for e in range(8): a(f"buffer_load_ushort v{X+8*rd+e}, v11, s[12:15], s{48+e} offen")
    for i in range(24): a(f"v_lshlrev_b32 v{X+i}, 16, v{X+i}")
    S = 48
    for e in range(8):
        a(f"v_add_f32 v{S+e}, v{X+e}, v{X+8+e}"); a(f"v_add_f32 v{S+e}, v{S+e}, v{X+16+e}")
    for sh in (1, 2, 4, 8):
        for e in range(8): a(f"v_add_f32_dpp v{S+e}, v{S+e}, v{S+e} row_ror:{sh} row_mask:0xf bank_mask:0xf")
    a("v_lshrrev_b32 v8, 4, v0"); a("v_lshlrev_b32 v8, 5, v8")
    a(f"ds_write_b128 v8, {vr(S)}", "w"); a(f"ds_write_b128 v8, {vr(S+4)} offset:16", "w")
    a("WAITTAG w"); a("s_barrier")
    a("v_lshlrev_b32 v8, 5, v5")
    a(f"ds_read_b128 {vr(S)}, v8"); a(f"ds_read_b128 {vr(S+4)}, v8 offset:16")
    for sh in (1, 2, 4, 8):
        for e in range(8): a(f"v_add_f32_dpp v{S+e}, v{S+e}, v{S+e} row_ror:{sh} row_mask:0xf bank_mask:0xf")
    for e in range(8): a(f"v_mul_f32 v{S+e}, {hx(f2u(1/576))}, v{S+e}")
    for i in range(24): a(f"v_sub_f32 v{X+i}, v{X+i}, v{S+(i&7)}")
    Hh = 56
    for m in range(4): a(f"v_cvt_pk_bf16_f32 v{Hh+m}, v{S+2*m}, v{S+2*m+1}")
    unpack(a, 64, Hh, 4)
    a("v_cmp_eq_u32 s[42:43], 64, v0"); a("v_mov_b32 v9, 65"); a("v_cmp_eq_u32 s[44:45], v9, v0"); a("v_cmp_gt_u32 vcc, 64, v0")
    for e in range(8):
        a(f"v_sub_f32 v{64+e}, v{S+e}, v{64+e}")
        a(f"v_cndmask_b32 v{X+16+e}, 0, v{X+16+e}, vcc")
        a(f"v_cndmask_b32 v{X+16+e}, v{X+16+e}, v{S+e}, s[42:43]")
        a(f"v_cndmask_b32 v{X+16+e}, v{X+16+e}, v{64+e}, s[44:45]")
    for rd in range(3):
        for m in range(4): a(f"v_cvt_pk_bf16_f32 v{72+4*rd+m}, v{X+8*rd+2*m}, v{X+8*rd+2*m+1}")
        a(f"buffer_store_dwordx4 {vr(72+4*rd)}, v{13+rd}, {WS}, s20 offen sc1")
    a("s_branch L0_end")
    a("L0_ln:")
    a(f"s_sub_u32 s16, s2, {N_WO}"); a("s_and_b32 s17, s16, 7"); a("s_lshl_b32 s17, s17, 5"); a("s_lshr_b32 s18, s16, 3"); a("s_add_u32 s17, s17, s18")
    srd(a, 12, 24, 2048 * 576 * 2)
    a("v_mul_u32_u24 v8, 1152, v3"); a("v_lshl_add_u32 v8, v2, 4, v8")
    a(f"s_mul_i32 s18, s17, {8*1152}"); a("s_mul_i32 s19, s3, 384"); a("s_add_u32 s18, s18, s19")
    a("s_cmp_eq_u32 s3, 3"); a(f"s_cselect_b32 s18, {hx(OOB)}, s18"); a("v_add_u32 v8, s18, v8")
    for i in range(3): a(f"buffer_load_dwordx4 {vr(16+4*i)}, v8, s[12:15], 0 offen offset:{128*i}")
    a("s_lshr_b32 s18, s16, 7"); a(f"s_mul_i32 s18, s18, {LBS}"); a("s_and_b32 s19, s16, 127"); a(f"s_mul_i32 s19, s19, {22*16}")
    a("s_add_u32 s18, s18, s19"); a(f"s_add_u32 s18, s18, {LB0+KV}")
    a("v_subrev_u32 v9, 192, v0"); a("v_cmp_gt_u32 vcc, 22, v9"); a(f"v_mov_b32 v10, {hx(OOB)}"); a("v_cndmask_b32 v9, v10, v4, vcc")
    for i in range(4): a(f"v_mov_b32 v{12+i}, 0")
    a(f"buffer_store_dwordx4 v[12:15], v9, {WS}, s18 offen sc1")
    tokgroup_addr(a, 17)
    a("v_lshlrev_b32 v9, 5, v2"); a("v_lshl_add_u32 v9, v3, 2, v9")
    for i in range(12): a(f"ds_bpermute_b32 v{32+i}, v9, v{16+i}")
    unpack(a, 48, 32, 12)
    ln_stats(a, 48, 72, 0)
    a(f"s_mov_b32 s22, {LB0+XN}"); a(f"s_mov_b32 s23, {LB0+ST}")
    ln_write(a, 48, 72, 16, 5, 22, None, 6, 23)
    a("L0_end:")
    end(a)
    return a, tot

def mf(d, A, B, c): return f"v_mfma_f32_16x16x32_bf16 {d}, {A}, {B}, {c}"

def phi_ops(src, dst, tmp):
    o = []
    n = len(src)
    for i in range(n): o.append(f"v_mul_f32 v{tmp[i]}, {hx(f2u(LOG2E))}, v{src[i]}")
    for i in range(n): o.append(f"v_min_f32 v{tmp[i]}, 0, v{tmp[i]}")
    for i in range(n):
        o.append(f"v_exp_f32 v{tmp[i]}, v{tmp[i]}")
        o.append(f"v_max_f32 v{dst[i]}, 0, v{src[i]}")
    for i in range(n): o.append(f"v_add_f32 v{tmp[i]}, {hx(f2u(1e-6))}, v{tmp[i]}")
    for i in range(n): o.append(f"v_add_f32 v{dst[i]}, v{dst[i]}, v{tmp[i]}")
    return o

def ka(l):
    a = Prog(); begin(a, 256)
    LB = LB0 + l * LBS
    xcd_split(a, 16, 17)
    a("s_lshr_b32 s18, s17, 4"); a("s_lshl_b32 s16, s16, 1"); a("s_add_u32 s16, s16, s18")
    a("s_and_b32 s17, s17, 15")
    a("s_lshl_b32 s18, s16, 2"); a("s_add_u32 s18, s18, s3")
    a(f"s_mul_i32 s20, s18, {2*72*256}"); a(f"s_add_u32 s20, s20, {LB+XN}"); a(f"s_add_u32 s21, s20, {72*256}")
    a(f"s_mul_i32 s22, s17, {WQ_P}"); a("s_lshl_b32 s23, s3, 12"); a("s_add_u32 s22, s22, s23")
    if WQ: a(f"s_add_u32 s22, s22, {WQ}")
    a("v_add_u32 v5, 0x10000, v4")
    X = lambda t, ks: ar((ks * 2 + t) * 4)
    def xload(ks):
        o = []
        for t in range(2):
            o.append(f"buffer_load_dwordx4 {X(t,ks)}, v4, {WS}, s{20+t} offen offset:{(ks&3)*1024}")
        if ks & 3 == 3: o += ["s_add_u32 s20, s20, 4096", "s_add_u32 s21, s21, 4096"]
        return o
    def wround(i):
        o = [f"s_add_u32 m0, s23, {i*16384}"]
        for j in range(4): o.append((f"buffer_load_dwordx4 v4, {WS}, s22 offen offset:{j*1024} lds", f"w{i}"))
        o.append("s_add_u32 s22, s22, 16384")
        return o
    xs = 0
    for i in range(8):
        a.ext(wround(i))
        while xs < 18 and xs < 3.2 * (i + 1):
            a.ext(xload(xs)); xs += 1
    KL = 131072
    a("v_lshrrev_b32 v9, 4, v0"); a("v_and_b32 v10, 15, v0")
    a("v_subrev_u32 v11, 160, v0"); a("v_lshrrev_b32 v12, 1, v11")
    a("v_cmp_gt_u32 s[42:43], 64, v11")
    a("v_cndmask_b32 v9, v9, v12, s[42:43]")
    a("v_lshlrev_b32 v12, 2, v9"); a("s_mov_b32 s24, 0xB3A266"); a("v_lshrrev_b32 v12, v12, s24"); a("v_and_b32 v12, 15, v12")
    a("v_lshrrev_b32 v13, v9, 50"); a("v_and_b32 v13, 1, v13")
    a("v_lshrrev_b32 v14, 2, v10"); a("v_lshlrev_b32 v14, 8, v14"); a("v_and_b32 v15, 3, v10"); a("v_lshl_add_u32 v14, v15, 2, v14")
    a("v_lshl_add_u32 v14, v13, 10, v14"); a("v_add_u32 v14, 2048, v14")
    a("v_and_b32 v15, 1, v0"); a("v_lshlrev_b32 v16, 9, v15"); a("v_lshl_add_u32 v16, v13, 2, v16"); a("v_add_u32 v16, 6144, v16")
    a("v_cndmask_b32 v14, v14, v16, s[42:43]"); a("v_lshl_add_u32 v14, v12, 4, v14")
    a("v_subrev_u32 v11, 96, v0"); a("v_lshrrev_b32 v16, 5, v11"); a("v_lshlrev_b32 v16, 9, v16"); a("v_bfe_u32 v17, v11, 1, 4"); a("v_lshl_add_u32 v16, v17, 4, v16")
    a("v_mul_u32_u24 v17, 1028, v15"); a("v_add3_u32 v16, v16, v17, 0"); a("v_add_u32 v16, 4096, v16")
    a("v_cmp_gt_u32 vcc, 64, v11"); a("v_cndmask_b32 v6, v14, v16, vcc")
    a("v_and_b32 v6, 0x1fff, v6"); a(f"v_add_u32 v6, {KL}, v6")
    a("s_mul_i32 s24, s3, 7168"); a(f"s_add_u32 s24, s24, {KL}"); a("v_add_u32 v7, s24, v4")
    a("v_lshlrev_b32 v9, 2, v0"); a(f"v_add_u32 v8, {KL}, v9")
    a(f"v_mov_b32 v11, {hx(OOB)}"); a("v_cmp_gt_u32 vcc, 172, v0"); a("v_cndmask_b32 v10, v11, v9, vcc")
    a("v_and_b32 v12, 7, v1"); a("v_cmp_gt_u32 s[44:45], 2, v12"); a("v_and_b32 v12, 15, v1"); a("v_cmp_eq_u32 s[46:47], 6, v12")
    a("v_lshrrev_b32 v13, 5, v1"); a("v_lshl_add_u32 v13, v13, 4, v12"); a("v_lshlrev_b32 v13, 3, v13")
    a("v_and_b32 v14, 16, v1"); a("v_cmp_ne_u32 vcc, 0, v14"); a("v_cndmask_b32 v11, v11, v13, vcc")
    a(f"s_mul_i32 s25, s17, {KV_P}"); a(f"s_add_u32 s25, s25, {LB+KV}")
    a("s_lshl_b32 s26, s18, 15"); a("s_lshl_b32 s27, s17, 10"); a("s_add_u32 s26, s26, s27"); a(f"s_add_u32 s26, s26, {LB+PQM}"); a("s_add_u32 s28, s26, 16384")
    a("s_lshl_b32 s27, s18, 4"); a("s_add_u32 s27, s27, s17"); a("s_lshl_b32 s27, s27, 8"); a(f"s_add_u32 s27, s27, {LB+PQL}")

    ACC1 = 16; ACC2 = 56; WB = 80; NB = 12; OP = 128; TM = 148; KD = 164; GA = 192
    acc1 = lambda s, t: ACC1 + (s * 2 + t) * 4
    acc2 = lambda s, t: ACC2 + (s * 2 + t) * 4
    seq = []
    for kp in range(9):
        for s in range(5): seq.append((1, s, kp, [kp * 10 + s * 2, kp * 10 + s * 2 + 1]))
    for kp in range(9):
        for s, F in enumerate((4, 5, 6)): seq.append((2, s, kp, [wq_frag(F, 2 * kp), wq_frag(F, 2 * kp + 1)]))
    frs = [f for x in seq for f in x[3]]
    have = [-1]
    def rd(i):
        f = frs[i]; o = []
        r = f // 16
        if r > have[0]:
            r2 = min(7, r | 1) if r else 0
            o += [f"WAITTAG w{r2}", "s_barrier"]; have[0] = r2
        o.append(f"ds_read_b128 {vr(WB + 4*(i % NB))}, {'v5' if f >= 64 else 'v4'} offset:{(f % 64) * 1024}")
        return o
    RD = 8
    for i in range(RD): a.ext(rd(i))
    slots = []
    for gi, (ps, s, kp, _) in enumerate(seq):
        w = [vr(WB + 4 * ((2 * gi + kk) % NB)) for kk in range(2)]
        for t in range(2):
            for kk in range(2):
                ks = 2 * kp + kk
                d = vr(acc1(s, t) if ps == 1 else acc2(s, t)); c = d if ks else "0"
                m = mf(d, X(t, ks), w[kk], c) if ps == 1 else mf(d, w[kk], X(t, ks), c)
                pre = [f"NEED {w[0]}, {w[1]}"] if (t == 0 and kk == 0) else []
                post = []
                if kk == 1 and 2 * gi + RD + t < len(frs): post = rd(2 * gi + RD + t)
                slots.append([pre, m, post])
    f = []
    for s in range(2):
        src = [acc1(s, 0) + j for j in range(8)]
        f += phi_ops(src, src, [TM + j for j in range(8)])
    src = [acc1(4, 0) + j for j in range(8)]
    f += phi_ops(src, [TM + 8 + j for j in range(8)], [TM + j for j in range(8)])
    for j in range(8): f.append(f"v_cndmask_b32 v{src[j]}, v{src[j]}, v{TM+8+j}, s[44:45]")
    for j in range(8): f.append(f"v_cndmask_b32 v{src[j]}, v{src[j]}, 1.0, s[46:47]")
    for s in range(5):
        for m in range(4): f.append(f"v_cvt_pk_bf16_f32 v{OP+4*s+m}, v{acc1(s,0)+2*m}, v{acc1(s,0)+2*m+1}")
    for i, (x, y) in enumerate([(0, 2), (1, 3), (0, 4), (1, 4), (4, 2), (4, 3), (4, 4)]):
        f.append(mf(vr(KD + 4 * i), vr(OP + 4 * x), vr(OP + 4 * y), "0"))
    n1 = 45 * 4
    left = place(slots, f, 3, start=n1 + 3, end=len(slots) - 8)
    f = [(f"ds_write_b128 v7, {vr(KD+4*i)} offset:{i*1024}", "kvw") for i in range(7)]
    place(slots, f, 3, start=len(slots) - 4)
    a.ext(flat(slots))
    a("WAITTAG kvw"); a("s_barrier")
    for o, (ad, off) in enumerate([("v8", 0), ("v8", 1024), ("v6", 0)]):
        for w in range(4): a(f"ds_read_b32 v{GA+4*o+w}, {ad} offset:{off + 7168*w}")
    qs = [acc2(s, 0) + j for s in range(2) for j in range(8)] + [acc2(2, t) + j for t in range(2) for j in range(2)]
    ph = phi_ops(qs, qs, [WB + j for j in range(20)])
    a.ext(ph[:20])
    for o in range(3):
        a(f"v_add_f32 v{GA+4*o}, v{GA+4*o}, v{GA+4*o+1}"); a(f"v_add_f32 v{GA+4*o+2}, v{GA+4*o+2}, v{GA+4*o+3}")
        a(f"v_add_f32 v{GA+4*o}, v{GA+4*o}, v{GA+4*o+2}")
        a(f"buffer_atomic_add_f32 v{GA+4*o}, {'v10' if o == 2 else 'v9'}, {WS}, s25 offen offset:{1024*o}")
    a.ext(ph[20:])
    for t in range(2):
        for s in range(2):
            for m in range(2): a(f"v_cvt_pk_bf16_f32 v{OP+4*t+2*s+m}, v{acc2(s,t)+2*m}, v{acc2(s,t)+2*m+1}")
        a(f"buffer_store_dwordx4 {vr(OP+4*t)}, v4, {WS}, s{26+2*t} offen sc1")
    for t in range(2): a(f"v_cvt_pk_bf16_f32 v{OP+8+t}, v{acc2(2,t)}, v{acc2(2,t)+1}")
    a(f"buffer_store_dwordx2 {vr(OP+8,2)}, v11, {WS}, s27 offen sc1")
    end(a)
    return a

def kb(l):
    a = Prog(); begin(a, 256)
    LB = LB0 + l * LBS
    xcd_split(a, 16, 17)
    a("s_lshl_b32 s16, s16, 3"); a("s_lshr_b32 s18, s17, 2"); a("s_add_u32 s16, s16, s18")
    a("s_and_b32 s17, s17, 3")
    a("v_and_b32 v2, 15, v1"); a("v_lshrrev_b32 v3, 4, v1")
    a(f"v_mov_b32 v15, {hx(OOB)}")
    a(f"s_mul_i32 s20, s3, {4*KV_P}"); a(f"s_add_u32 s20, s20, {LB+KV}")
    a("v_and_b32 v5, 3, v2"); a("v_bfe_u32 v6, v2, 2, 1"); a("v_lshl_add_u32 v7, v6, 1, v5")
    a("v_cmp_gt_u32 s[42:43], 2, v5"); a("v_cndmask_b32 v7, v7, v5, s[42:43]")
    a("v_cndmask_b32 v6, v6, v5, s[42:43]"); a("v_cmp_eq_u32 s[44:45], 0, v6")
    a("v_lshlrev_b32 v8, 6, v7"); a("v_lshl_add_u32 v8, v3, 4, v8")
    a("v_lshrrev_b32 v9, 1, v3"); a("v_lshlrev_b32 v10, 3, v7"); a("v_lshl_add_u32 v10, v9, 2, v10")
    a("v_cmp_gt_u32 vcc, 8, v2"); a("s_or_b64 s[46:47], vcc, s[42:43]"); a("s_orn2_b64 s[48:49], s[42:43], vcc")
    a("v_cndmask_b32 v11, v15, v8, s[46:47]"); a("v_cndmask_b32 v12, v15, v8, s[48:49]")
    a("v_cndmask_b32 v13, v15, v10, s[46:47]"); a("v_cndmask_b32 v14, v15, v10, s[48:49]")
    a("v_lshl_add_u32 v9, v9, 4, v2"); a("v_lshlrev_b32 v9, 3, v9")
    a("v_and_b32 v5, 1, v3"); a("v_cmp_eq_u32 s[50:51], 1, v5"); a("v_cndmask_b32 v10, v15, v9, s[50:51]")
    KVR = 16
    PQ = 80
    PL = 144
    a("s_lshl_b32 s21, s16, 15"); a("s_lshl_b32 s22, s3, 12"); a("s_add_u32 s21, s21, s22"); a(f"s_add_u32 s21, s21, {LB+PQM}"); a("s_add_u32 s22, s21, 16384")
    a("s_lshl_b32 s23, s16, 12"); a("s_lshl_b32 s24, s3, 10"); a("s_add_u32 s23, s23, s24"); a(f"s_add_u32 s23, s23, {LB+PQL}")
    for i in range(4):
        k = KVR + 16 * i
        a(f"buffer_load_dwordx4 {vr(k)}, v4, {WS}, s20 offen")
        a(f"buffer_load_dwordx4 {vr(k+4)}, v4, {WS}, s20 offen offset:1024")
        a(f"buffer_load_dwordx4 {vr(k+8)}, v{11+(i&1)}, {WS}, s20 offen offset:2048")
        a(f"buffer_load_dwordx2 {vr(k+12,2)}, v9, {WS}, s20 offen offset:{2048+384}")
        a(f"buffer_load_dword v{k+14}, v{13+(i&1)}, {WS}, s20 offen offset:{2048+640}")
        a(f"s_add_u32 s20, s20, {KV_P}")
        for t in range(2): a(f"buffer_load_dwordx4 {vr(PQ+16*i+8*t+2)}, v4, {WS}, s{21+t} offen offset:{1024*i}")
        a(f"buffer_load_dwordx2 {vr(PL+2*i,2)}, v10, {WS}, s23 offen offset:{256*i}")
    RS = 152; R8 = 160; SD = 164
    a(f"s_mul_i32 s24, s16, {2*72*256}"); a(f"s_mul_i32 s25, s17, {18*256}"); a("s_add_u32 s24, s24, s25")
    a("s_lshl_b32 s25, s3, 10"); a("s_add_u32 s26, s24, s25")
    a(f"s_add_u32 s28, s26, {LB+XN}"); a(f"s_add_u32 s29, s28, {72*256}")
    a(f"s_add_u32 s30, s24, {LB+XN+4096}"); a(f"s_add_u32 s31, s30, {72*256}")
    a("v_lshlrev_b32 v5, 1, v9"); a("v_and_b32 v6, 1, v3"); a("v_lshl_add_u32 v5, v6, 3, v5")
    a("s_cmp_eq_u32 s3, 0"); a("s_cselect_b64 vcc, -1, 0"); a("v_cndmask_b32 v5, v15, v5, vcc")
    a("s_lshl_b32 s32, s16, 8"); a(f"s_add_u32 s32, s32, {LB+ST+4}"); a("v_lshlrev_b32 v6, 3, v2")
    for t in range(2):
        a(f"buffer_load_dwordx4 {vr(RS+4*t)}, v4, {WS}, s{28+t} offen")
        a(f"buffer_load_dwordx2 {vr(R8+2*t,2)}, v5, {WS}, s{30+t} offen")
        a(f"buffer_load_dword v{SD+t}, v6, {WS}, s32 offen offset:{128*t}")
    a("s_mul_i32 s33, s17, 9"); a("s_lshl_b32 s34, s3, 1"); a("s_add_u32 s34, s34, s33"); a(f"s_mul_i32 s34, s34, {18*1024}"); a(f"s_add_u32 s34, s34, {WO}")
    a(f"s_add_u32 s35, s34, {18*1024}")
    a("s_add_u32 s36, s33, 8"); a("s_cmp_eq_u32 s3, 0"); a("s_cselect_b32 s36, s36, 36"); a(f"s_mul_i32 s36, s36, {18*1024}"); a(f"s_add_u32 s36, s36, {WO}")
    a("s_cmp_lt_u32 s3, 2"); a("s_cselect_b64 vcc, -1, 0"); a("v_cndmask_b32 v7, v15, v4, vcc")
    W = lambda n, ks: ar((ks * 3 + n) * 4)
    for ks in range(18):
        for n in range(3): a(f"buffer_load_dwordx4 {W(n,ks)}, {'v7' if n == 2 else 'v4'}, {WS}, s{34+n} offen offset:{(ks&3)*1024}")
        if ks & 3 == 3:
            for n in range(3): a(f"s_add_u32 s{34+n}, s{34+n}, 4096")
    AO = 168
    D = 200
    OU = 224
    for i in range(4):
        for t in range(2):
            a(f"v_mov_b32 v{PQ+16*i+8*t+1}, 0"); a(f"v_mov_b32 v{PQ+16*i+8*t+7}, 0")
    for s in range(2):
        for x in (1, 7, 9, 15): a(f"v_mov_b32 v{AO+16*s+x}, 0")
    a("s_lshl_b32 s37, s3, 13"); a("v_add_u32 v8, s37, v4")
    a("s_lshr_b32 s37, s3, 1"); a("s_lshl_b32 s37, s37, 11"); a("s_and_b32 s38, s3, 1"); a("s_lshl_b32 s38, s38, 3"); a("s_add_u32 s37, s37, s38")
    a("s_add_u32 s37, s37, 32768"); a("v_add_u32 v246, s37, v4")
    for i in range(4):
        k = KVR + 16 * i; A = AO + 16 * (i & 1)
        a(f"v_cvt_pk_bf16_f32 v{A+2}, v{k}, v{k+1}"); a(f"v_cvt_pk_bf16_f32 v{A+3}, v{k+2}, v{k+3}")
        a(f"v_cvt_pk_bf16_f32 v{A+4}, v{k+4}, v{k+5}"); a(f"v_cvt_pk_bf16_f32 v{A+5}, v{k+6}, v{k+7}")
        a(f"v_cvt_pk_bf16_f32 v{k+8}, v{k+8}, v{k+9}"); a(f"v_cvt_pk_bf16_f32 v{k+9}, v{k+10}, v{k+11}")
        a(f"v_cvt_pk_bf16_f32 v{A}, v{k+12}, 0"); a(f"v_cvt_pk_bf16_f32 v{A+6}, 0, v{k+13}")
        a(f"v_cvt_pk_bf16_f32 v{k+10}, v{k+14}, 0"); a(f"v_cvt_pk_bf16_f32 v{k+11}, 0, v{k+14}")
        a(f"v_cndmask_b32 v{A+10}, 0, v{k+8}, s[44:45]"); a(f"v_cndmask_b32 v{A+11}, 0, v{k+9}, s[44:45]")
        a(f"v_cndmask_b32 v{A+12}, v{k+8}, 0, s[44:45]"); a(f"v_cndmask_b32 v{A+13}, v{k+9}, 0, s[44:45]")
        a(f"v_cndmask_b32 v{A+8}, 0, v{k+10}, s[44:45]"); a(f"v_cndmask_b32 v{A+14}, v{k+11}, 0, s[44:45]")
        for t in range(2):
            b = PQ + 16 * i + 8 * t
            a(f"v_mov_b32 v{b}, v{PL+2*i+t}"); a(f"v_mov_b32 v{b+6}, v{PL+2*i+t}")
        for t in range(2):
            b = PQ + 16 * i + 8 * t; d = D + 12 * t
            a(mf(vr(d + 8), vr(A + 8), vr(b), "0")); a(mf(vr(d + 8), vr(A + 12), vr(b + 4), vr(d + 8)))
        for t in range(2):
            b = PQ + 16 * i + 8 * t; d = D + 12 * t
            a(mf(vr(d), vr(A), vr(b), "0")); a(mf(vr(d + 4), vr(A + 4), vr(b + 4), "0"))
        for t in range(2):
            d = D + 12 * t; r = 232 + 3 * t
            a(f"v_add_f32 v{r}, {hx(f2u(1e-6))}, v{d+8}"); a(f"v_add_f32 v{r+1}, {hx(f2u(1e-6))}, v{d+9}")
        for t in range(2):
            r = 232 + 3 * t
            a(f"v_rcp_f32 v{r}, v{r}"); a(f"v_rcp_f32 v{r+1}, v{r+1}")
        for t in range(2):
            d = D + 12 * t; r = 232 + 3 * t
            a(f"v_cndmask_b32 v{r+2}, v{r}, v{r+1}, s[50:51]")
            for j in range(8): a(f"v_mul_f32 v{d+j}, v{d+j}, v{r+(j>>2)}")
            for j in range(2):
                a(f"v_{'fmac' if i & 1 else 'mul'}_f32 v{238+2*t+j}, v{d+10+j}, v{r+2}")
            for m in range(4): a(f"v_cvt_pk_bf16_f32 v{OU+4*t+m}, v{d+2*m}, v{d+2*m+1}")
            a(f"ds_write_b128 v8, {vr(OU+4*t)} offset:{(2*i+t)*1024}", "ow")
            if i & 1: a(f"v_cvt_pk_bf16_f32 v{242+2*t+(i>>1)}, v{238+2*t}, v{238+2*t+1}")
    for t in range(2): a(f"ds_write_b64 v246, {vr(242+2*t,2)} offset:{t*1024}", "ow")
    a("WAITTAG ow"); a("s_barrier")
    OB = 16; NB = 12; AC = 72
    rd = lambda i: f"ds_read_b128 {vr(OB+4*(i%NB))}, v4 offset:{i*1024}"
    for i in range(8): a(rd(i))
    U = 96
    f = []
    for t in range(2):
        for m in range(4): f += [f"v_lshlrev_b32 v{U+12*t+2*m}, 16, v{RS+4*t+m}", f"v_and_b32 v{U+12*t+2*m+1}, 0xffff0000, v{RS+4*t+m}"]
        for m in range(2): f += [f"v_lshlrev_b32 v{U+12*t+8+2*m}, 16, v{R8+2*t+m}", f"v_and_b32 v{U+12*t+8+2*m+1}, 0xffff0000, v{R8+2*t+m}"]
    slots = []
    for kp in range(9):
        cnt = 0
        for t in range(2):
            for n in range(3):
                for kk in range(2):
                    ks = 2 * kp + kk; d = vr(AC + 12 * t + 4 * n)
                    post = []
                    if cnt % 3 == 2 and 4 * kp + 8 + cnt // 3 < 36: post = [rd(4 * kp + 8 + cnt // 3)]
                    slots.append([[], mf(d, W(n, ks), vr(OB + 4 * ((2 * ks + t) % NB)), d if ks else "0"), post]); cnt += 1
    place(slots, f, 2, start=4)
    a.ext(flat(slots))
    a(f"s_add_u32 s28, s26, {LB+Y1}"); a(f"s_add_u32 s29, s28, {72*256}"); a(f"s_add_u32 s30, s24, {LB+Y1+4096}")
    YO = 120; SQ = 132
    for t in range(2):
        for j in range(12): a(f"v_fma_f32 v{U+12*t+j}, v{U+12*t+j}, v{SD+t}, v{AC+12*t+j}")
        for m in range(4): a(f"v_cvt_pk_bf16_f32 v{YO+4*t+m}, v{U+12*t+2*m}, v{U+12*t+2*m+1}")
        a(f"buffer_store_dwordx4 {vr(YO+4*t)}, v4, {WS}, s{28+t} offen sc1")
        for m in range(2): a(f"v_cvt_pk_bf16_f32 v{YO+8+2*t+m}, v{U+12*t+8+2*m}, v{U+12*t+8+2*m+1}")
    a(f"v_permlane16_swap_b32 v{YO+8}, v{YO+10}"); a(f"v_permlane16_swap_b32 v{YO+9}, v{YO+11}")
    a("v_and_b32 v6, 1, v3"); a(f"v_mul_u32_u24 v6, {72*256}, v6"); a("v_lshl_add_u32 v6, v9, 1, v6")
    a("s_cmp_eq_u32 s3, 0"); a("s_cselect_b64 vcc, -1, 0"); a("v_cndmask_b32 v6, v15, v6, vcc")
    a(f"buffer_store_dwordx4 {vr(YO+8)}, v6, {WS}, s30 offen sc1")
    for t in range(2): a(f"v_add_f32 v{SQ+2+t}, v{U+12*t+8}, v{U+12*t+9}")
    for t in range(2):
        for j in range(4): a(f"v_cndmask_b32 v{U+12*t+8+j}, 0, v{U+12*t+8+j}, vcc")
    for t in range(2):
        a(f"v_mul_f32 v{SQ+t}, v{U+12*t}, v{U+12*t}")
    for j in range(1, 12):
        for t in range(2): a(f"v_fmac_f32 v{SQ+t}, v{U+12*t+j}, v{U+12*t+j}")
    a(f"v_permlane16_swap_b32 v{SQ+2}, v{SQ+3}")
    a(f"v_permlane16_swap_b32 v{SQ}, v{SQ+1}"); a(f"v_add_f32 v{SQ}, v{SQ}, v{SQ+1}")
    a(f"v_mov_b32 v{SQ+1}, v{SQ}"); a(f"v_permlane32_swap_b32 v{SQ}, v{SQ+1}"); a(f"v_add_f32 v{SQ}, v{SQ}, v{SQ+1}")
    a("v_lshlrev_b32 v6, 2, v1"); a("v_cmp_gt_u32 vcc, 32, v1"); a("v_cndmask_b32 v6, v15, v6, vcc")
    a("s_lshl_b32 s31, s17, 2"); a("s_add_u32 s31, s31, s3"); a("s_cmp_eq_u32 s31, 1"); a("s_cselect_b64 vcc, -1, 0"); a("v_cndmask_b32 v7, v15, v6, vcc")
    a("s_lshl_b32 s31, s31, 13"); a("s_lshl_b32 s32, s16, 7"); a("s_add_u32 s31, s31, s32"); a(f"s_add_u32 s31, s31, {LB+SSQ}"); a(f"s_add_u32 s32, s32, {LB+DMU}")
    a(f"buffer_store_dword v{SQ}, v6, {WS}, s31 offen sc1")
    a(f"buffer_store_dword v{SQ+2}, v7, {WS}, s32 offen sc1")
    end(a)
    return a

def big(i):
    return ar(4 * i) if i < 64 else vr(224 + 4 * (i - 64))
GC1 = -2 * LOG2E * 0.7978845608028654
GC3 = GC1 * 0.044715
C1, C3, CV = 16, 20, 24
FACC = [28, 60, 92]; FT = 124; FH = 140; FWB = 148; FNB = 12

def ffn_ids(a):
    xcd_split(a, 16, 17)
    a("s_and_b32 s18, s16, 3")
    a("s_lshr_b32 s16, s16, 2"); a("s_lshl_b32 s16, s16, 2"); a("s_lshr_b32 s19, s17, 3"); a("s_add_u32 s16, s16, s19")
    a("s_and_b32 s17, s17, 7")
    a("s_mul_i32 s25, s3, 9216")

def dma_chunk(slot, tag, sreg=24):
    o = []
    for j in range(9):
        if j % 4 == 0: o.append(f"s_add_u32 m0, s25, {slot*CH + j*1024}")
        o.append((f"buffer_load_dwordx4 v4, {WS}, s{sreg} offen offset:{(j%4)*1024} lds", tag))
        if j % 4 == 3: o.append(f"s_add_u32 s{sreg}, s{sreg}, 4096")
    o.append(f"s_add_u32 s{sreg}, s{sreg}, {CH - 8192}")
    return o

def gelu_ops(o):
    f = []
    for t in range(4):
        g = [o + 4 * t + i for i in range(4)]; u = [o + 16 + 4 * t + i for i in range(4)]
        x = [FT + 8 * (t & 1) + i for i in range(4)]; m = [FT + 8 * (t & 1) + 4 + i for i in range(4)]
        for i in range(4): f.append(f"v_mul_f32 v{x[i]}, v{g[i]}, v{g[i]}")
        for i in range(4): f.append(f"v_fma_f32 v{x[i]}, v{x[i]}, v{C3+t}, v{C1+t}")
        for i in range(4): f.append(f"v_mul_f32 v{x[i]}, v{x[i]}, v{g[i]}")
        for i in range(4):
            f.append(f"v_exp_f32 v{x[i]}, v{x[i]}"); f.append(f"v_mul_f32 v{m[i]}, v{g[i]}, v{u[i]}")
        for i in range(4): f.append(f"v_fma_f32 v{x[i]}, v{x[i]}, v{CV+t}, v{CV+t}")
        for i in range(4): f.append(f"v_rcp_f32 v{x[i]}, v{x[i]}")
        for i in range(4): f.append(f"v_mul_f32 v{m[i]}, v{m[i]}, v{x[i]}")
        f.append(f"v_cvt_pk_bf16_f32 v{FH+2*t}, v{m[0]}, v{m[1]}"); f.append(f"v_cvt_pk_bf16_f32 v{FH+2*t+1}, v{m[2]}, v{m[3]}")
        if t & 1:
            h = FH + 2 * (t - 1)
            tail = [f"v_permlane16_swap_b32 v{h}, v{h+2}", f"v_permlane16_swap_b32 v{h+1}, v{h+3}",
                    (f"buffer_store_dwordx4 {vr(h)}, v9, {WS}, s{26 + (t>>1)} offen sc1", "h"), f"s_add_u32 s{26+(t>>1)}, s{26+(t>>1)}, 4096"]
            if t == 1: pend = tail
            else: f += tail
        if t == 2:
            k = len(f) - 30
            f[k:k] = pend
    return f

def g1(l):
    a = Prog(); begin(a, 256)
    LB = LB0 + l * LBS
    ffn_ids(a)
    a("s_lshl_b32 s19, s18, 3"); a("s_add_u32 s19, s19, s17"); a(f"s_mul_i32 s24, s19, {9*CH}"); a("s_add_u32 s24, s24, s25"); a(f"s_add_u32 s24, s24, {WGU}")
    a.ext(dma_chunk(0, "w0")); a.ext(dma_chunk(1, "w1"))
    a("s_lshl_b32 s19, s16, 2"); a("s_add_u32 s19, s19, s3")
    a(f"s_mul_i32 s20, s19, {4*72*256}"); a(f"s_add_u32 s20, s20, {LB+Y1}")
    for t in range(1, 4): a(f"s_add_u32 s{20+t}, s20, {t*72*256}")
    xl = []
    for ks in range(18):
        for t in range(4): xl.append(f"buffer_load_dwordx4 {big(ks*4+t)}, v4, {WS}, s{20+t} offen offset:{(ks&3)*1024}")
        if ks & 3 == 3: xl += [f"s_add_u32 s{20+t}, s{20+t}, 4096" for t in range(4)]
    n0 = 8 * 4 + 2 * 4 + 8
    a.ext(xl[:n0]); xl = xl[n0:]
    for s in range(4): a(f"v_add_u32 v{5+s}, {s*CH}, v4")
    a("v_and_b32 v2, 15, v1"); a("v_lshrrev_b32 v3, 4, v1")
    a("v_and_b32 v9, 1, v3"); a("v_mul_u32_u24 v9, 147456, v9"); a("v_lshrrev_b32 v10, 1, v3"); a("v_lshl_add_u32 v9, v10, 8, v9"); a("v_lshl_add_u32 v9, v2, 4, v9")
    a(f"s_mul_i32 s26, s19, {4*147456}"); a(f"s_mul_i32 s27, s18, {CH}"); a("s_add_u32 s26, s26, s27"); a("s_lshl_b32 s27, s17, 9"); a("s_add_u32 s26, s26, s27")
    a(f"s_add_u32 s26, s26, {LB+HH}"); a(f"s_add_u32 s27, s26, {2*147456}")
    SQ = 196
    a("v_lshlrev_b32 v10, 15, v3"); a("v_lshl_add_u32 v10, v2, 2, v10")
    a("s_lshl_b32 s28, s19, 8"); a(f"s_add_u32 s28, s28, {LB+SSQ}")
    sq = []
    for i in range(4):
        for t in range(4): sq.append(f"buffer_load_dword v{SQ+4*t+i}, v10, {WS}, s28 offen offset:{64*t}")
        sq.append("s_add_u32 s28, s28, 8192")
    st = []
    for t in range(4): st += [f"v_add_f32 v{SQ+4*t}, v{SQ+4*t}, v{SQ+4*t+1}", f"v_add_f32 v{SQ+4*t+2}, v{SQ+4*t+2}, v{SQ+4*t+3}"]
    for t in range(4): st.append(f"v_add_f32 v{SQ+4*t}, v{SQ+4*t}, v{SQ+4*t+2}")
    for sw in ("16", "32"):
        for t in range(4): st.append(f"v_mov_b32 v{SQ+4*t+1}, v{SQ+4*t}")
        for t in range(4): st.append(f"v_permlane{sw}_swap_b32 v{SQ+4*t}, v{SQ+4*t+1}")
        for t in range(4): st.append(f"v_add_f32 v{SQ+4*t}, v{SQ+4*t}, v{SQ+4*t+1}")
    st.append(f"v_mov_b32 v{SQ+1}, {hx(f2u(1e-5))}")
    for t in range(4): st.append(f"v_fmamk_f32 v{CV+t}, v{SQ+4*t}, {hx(f2u(1/576))}, v{SQ+1}")
    for t in range(4): st.append(f"v_rsq_f32 v{SQ+4*t}, v{CV+t}")
    for t in range(4): st.append(f"v_rcp_f32 v{SQ+4*t+2}, v{CV+t}")
    for t in range(4): st.append(f"v_mul_f32 v{C1+t}, {hx(f2u(GC1))}, v{SQ+4*t}")
    for t in range(4): st.append(f"v_mul_f32 v{SQ+4*t}, {hx(f2u(GC3))}, v{SQ+4*t}")
    for t in range(4): st.append(f"v_mul_f32 v{C3+t}, v{SQ+4*t}, v{SQ+4*t+2}")
    seq = []
    for kp in range(9):
        for c in range(2):
            for f in range(2): seq.append((c, kp, f))
    for c in range(2, 9):
        for kp in range(9):
            for f in range(2): seq.append((c, kp, f))
    frs = [(c, kp * 4 + f * 2 + kk) for (c, kp, f) in seq for kk in range(2)]
    wb = lambda i: vr(FWB + 4 * (i % FNB))
    def rd(i):
        c, fi = frs[i]; o = []
        if c >= 2 and fi == 0:
            if c == 2: o.append(f"NEED {wb(i-5)}")
            o += [f"WAITTAG w{c}", "s_barrier"]
        o.append(f"ds_read_b128 {wb(i)}, v{5 + c % 4} offset:{fi*1024}")
        return o
    RD = 6
    a("WAITTAG w0,w1"); a("s_barrier")
    for i in range(RD): a.ext(rd(i))
    slots = []; start = {}
    for gi, (c, kp, f) in enumerate(seq):
        if kp == 0 and f == 0: start[c] = len(slots)
        for t in range(4):
            for kk in range(2):
                ks = 2 * kp + kk; d = vr(FACC[c % 3] + 16 * f + 4 * t)
                pre = [f"NEED {wb(2*gi)}, {wb(2*gi+1)}"] if (t == 0 and kk == 0) else []
                post = []
                if kk == 1 and t in (0, 2) and 2 * gi + RD + t // 2 < len(frs): post = rd(2 * gi + RD + t // 2)
                slots.append([pre, mf(d, wb(2 * gi + kk), big(ks * 4 + t), d if ks else "0"), post])
    start[9] = len(slots)
    def spread(ops, s0, s1):
        pos = [i for i in range(s0, s1) if i % 4 == 3]
        for j, o in enumerate(ops): slots[pos[j * len(pos) // len(ops)]][2].append(o)
    spread(xl, 0, 150)
    spread(sq + dma_chunk(2, "w2") + dma_chunk(3, "w3"), 150, 250)
    place(slots, st, 2, start=256, end=start[2])
    for c in range(2, 9):
        if c + 2 < 9: spread(dma_chunk((c + 2) % 4, f"w{c+2}"), start[c] + 4, start[c] + 110)
        left = place(slots, gelu_ops(FACC[(c - 2) % 3]), 2, start=start[c] + 2, end=start[c + 1])
        if left: print("gelu left", c, left)
    a.ext(flat(slots))
    a.ext(gelu_ops(FACC[7 % 3])); a.ext(gelu_ops(FACC[8 % 3]))
    end(a)
    return a

def g2(l):
    a = Prog(); begin(a, 256)
    LB = LB0 + l * LBS
    ffn_ids(a)
    a("s_and_b32 s19, s17, 3")
    a("s_lshl_b32 s20, s18, 2"); a("s_add_u32 s20, s20, s19"); a(f"s_mul_i32 s24, s20, {9*CH}"); a("s_add_u32 s24, s24, s25"); a(f"s_add_u32 s24, s24, {WD}")
    a("s_lshl_b32 s26, s16, 3"); a("s_and_b32 s27, s17, 4"); a("s_add_u32 s26, s26, s27"); a("s_add_u32 s26, s26, s3")
    a(f"s_mul_i32 s20, s26, {2*147456}"); a(f"s_mul_i32 s21, s18, {CH}"); a("s_add_u32 s20, s20, s21"); a(f"s_add_u32 s20, s20, {LB+HH}"); a("s_add_u32 s21, s20, 147456")
    def hl(c):
        o = []
        for pp in range(4):
            for t in range(2): o.append(f"buffer_load_dwordx4 {big((c*4+pp)*2+t)}, v4, {WS}, s{20+t} offen offset:{pp*1024}")
        return o + ["s_add_u32 s20, s20, 4096", "s_add_u32 s21, s21, 4096"]
    for c in range(3):
        a.ext(dma_chunk(c, f"w{c}")); a.ext(hl(c))
    a("v_and_b32 v2, 15, v1"); a("v_lshrrev_b32 v3, 4, v1")
    a("v_and_b32 v13, 3, v2"); a("v_add_u32 v14, v13, v3"); a("v_lshrrev_b32 v15, 2, v2"); a("v_lshl_add_u32 v14, v14, 2, v15"); a("v_and_b32 v14, 15, v14")
    a("v_lshl_add_u32 v14, v13, 4, v14"); a("v_lshlrev_b32 v5, 4, v14")
    a("v_lshrrev_b32 v13, 3, v2"); a("v_lshl_add_u32 v13, v3, 1, v13"); a("v_and_b32 v14, 2, v2"); a("v_lshl_add_u32 v13, v14, 1, v13"); a("v_and_b32 v13, 7, v13")
    a("v_and_b32 v14, 7, v2"); a("v_lshl_add_u32 v13, v14, 3, v13"); a("v_lshlrev_b32 v9, 4, v13")
    for s in range(1, 4): a(f"v_add_u32 v{5+s}, {s*CH}, v5"); a(f"v_add_u32 v{9+s}, {s*CH}, v9")
    AC = 16
    acc = lambda nt, t: AC + 36 * t + 4 * nt
    seq = [(c, k2, nt) for c in range(9) for k2 in range(2) for nt in range(9)]
    frs = [(c, k2 * 18 + nt * 2 + kk, nt) for (c, k2, nt) in seq for kk in range(2)]
    wb = lambda i: vr(FWB + 4 * (i % FNB))
    def rd(i):
        c, fi, nt = frs[i]; o = []
        if fi == 0: o += [f"WAITTAG w{c}", "s_barrier"]
        o.append(f"ds_read_b128 {wb(i)}, v{(9 if nt == 8 else 5) + c % 4} offset:{fi*1024}")
        return o
    RD = 8
    for i in range(RD): a.ext(rd(i))
    slots = []
    for gi, (c, k2, nt) in enumerate(seq):
        for t in range(2):
            for kk in range(2):
                ks = c * 4 + k2 * 2 + kk; d = vr(acc(nt, t))
                pre = [f"NEED {wb(2*gi)}, {wb(2*gi+1)}"] if (t == 0 and kk == 0) else []
                post = []
                if kk == 0 and 2 * gi + RD + t < len(frs): post = rd(2 * gi + RD + t)
                slots.append([pre, mf(d, wb(2 * gi + kk), big(ks * 2 + t), d if ks else "0"), post])
    for c in range(9):
        ops = []
        if c == 0: ops += dma_chunk(3, "w3")
        elif 4 <= c + 2 < 9: ops += dma_chunk((c + 2) % 4, f"w{c+2}")
        if c + 3 < 9: ops += hl(c + 3)
        pos = [i for i in range(72 * c, 72 * c + 56) if i % 2 == 1]
        for j, o in enumerate(ops): slots[pos[j * len(pos) // len(ops)]][2].append(o)
    a.ext(flat(slots))
    a(f"s_mul_i32 s28, s26, {2*72*256}"); a(f"s_mul_i32 s29, s19, {18*256}"); a("s_add_u32 s28, s28, s29"); a(f"s_mul_i32 s29, s18, {ACT}"); a("s_add_u32 s28, s28, s29")
    a(f"s_add_u32 s28, s28, {LB+PP}"); a(f"s_add_u32 s29, s28, {72*256}"); a("s_add_u32 s30, s28, 4096")
    a("v_and_b32 v13, 1, v3"); a(f"v_mul_u32_u24 v13, {72*256}, v13"); a("v_lshrrev_b32 v14, 1, v3"); a("v_lshl_add_u32 v13, v14, 8, v13"); a("v_lshl_add_u32 v13, v2, 4, v13")
    O = 96
    for P in range(4):
        for t in range(2):
            o = O + 8 * P + 4 * t
            for m in range(4): a(f"v_cvt_pk_bf16_f32 v{o+m}, v{acc(2*P,t)+2*m}, v{acc(2*P,t)+2*m+1}")
            a(f"buffer_store_dwordx4 {vr(o)}, v4, {WS}, s{28+t} offen offset:{P*1024} sc1")
    o = O + 32
    for t in range(2):
        for m in range(2): a(f"v_cvt_pk_bf16_f32 v{o+2*t+m}, v{acc(8,t)+2*m}, v{acc(8,t)+2*m+1}")
    a(f"v_permlane16_swap_b32 v{o}, v{o+2}"); a(f"v_permlane16_swap_b32 v{o+1}, v{o+3}")
    a(f"buffer_store_dwordx4 {vr(o)}, v13, {WS}, s30 offen sc1")
    end(a)
    return a

def kd(l):
    a = Prog(); begin(a, 256)
    LB = LB0 + l * LBS
    if l == 1: a("s_load_dwordx2 s[6:7], s[0:1], 56")
    a("s_and_b32 s17, s2, 7"); a("s_lshl_b32 s17, s17, 5"); a("s_lshr_b32 s18, s2, 3"); a("s_add_u32 s17, s17, s18")
    tokgroup_addr(a, 17)
    L = 16; T = 80
    a("v_add_u32 v8, 4096, v5")
    srcs = [LB + Y1] + [LB + PP + i * ACT for i in range(4)]
    for s in range(5): a(f"s_mov_b32 s{24+s}, {srcs[s]}")
    for s in range(5):
        for i in range(3): a(f"buffer_load_dwordx4 {vr(L+12*s+4*i)}, {'v8' if i == 2 else 'v5'}, {WS}, s{24+s} offen offset:{2048*(i&1)}")
    a(f"s_mov_b32 s29, {LB+ST}"); a(f"s_mov_b32 s30, {LB+DMU}"); a("v_lshrrev_b32 v9, 1, v7")
    a(f"buffer_load_dword v10, v7, {WS}, s29 offen"); a(f"buffer_load_dword v11, v9, {WS}, s30 offen")
    unpack(a, T, L, 12)
    for s in range(1, 5):
        for i in range(12):
            a(f"v_lshlrev_b32 v12, 16, v{L+12*s+i}"); a(f"v_and_b32 v13, 0xffff0000, v{L+12*s+i}")
            a(f"v_add_f32 v{T+2*i}, v{T+2*i}, v12"); a(f"v_add_f32 v{T+2*i+1}, v{T+2*i+1}, v13")
    a("v_add_f32 v10, v10, v11")
    if l == 0:
        ln_stats(a, T, 104, 0)
        a(f"s_mov_b32 s22, {LB+LBS+XN}"); a(f"s_mov_b32 s23, {LB+LBS+ST}")
        ln_write(a, T, 104, L, 5, 22, 10, 6, 23)
    else:
        srd(a, 12, 6, 2048 * 576 * 2)
        a("v_and_b32 v2, 7, v1"); a("v_lshrrev_b32 v3, 3, v1")
        a("v_mul_u32_u24 v8, 1152, v3"); a("v_lshl_add_u32 v8, v2, 4, v8")
        a(f"s_mul_i32 s18, s17, {8*1152}"); a("s_mul_i32 s19, s3, 384"); a("s_add_u32 s18, s18, s19")
        a("s_cmp_eq_u32 s3, 3"); a(f"s_cselect_b32 s18, {hx(OOB)}, s18"); a("v_add_u32 v8, s18, v8")
        a("v_lshlrev_b32 v9, 5, v2"); a("v_lshl_add_u32 v9, v3, 2, v9")
        for i in range(24): a(f"v_add_f32 v{T+i}, v{T+i}, v10")
        for i in range(12):
            a(f"v_cvt_pk_bf16_f32 v{L+i}, v{T+2*i}, v{T+2*i+1}"); a(f"ds_bpermute_b32 v{L+12+i}, v9, v{L+i}")
        for i in range(3): a(f"buffer_store_dwordx4 {vr(L+12+4*i)}, v8, s[12:15], 0 offen offset:{128*i} sc1")
    end(a)
    return a

HEADER = open("interleave_layers__linear_attn_block__glu_gated_geglu__prompt.s.ref").read().split("; Override")[0] if __name__ == "__main__" else ""
def build_multi():
    a0, tot = k0()
    ks = [("k0_kernel", a0.finalize(True), 96, 96, 102)]
    ls = [("k0_kernel", tot, 256, 1024)]
    for l in range(2):
        for n, fn, vg, ac, lds in (("ka", ka, 512, 256, 163840), ("kb", kb, 512, 256, 40960), ("g1", g1, 512, 256, 163840), ("g2", g2, 512, 256, 163840), ("kd", kd, 128, 128, 1024)):
            ks.append((f"{n}{l}_kernel", fn(l).finalize(True), vg, ac, 102)); ls.append((f"{n}{l}_kernel", 256, 256, lds))
    return make_file(ls, ks), [x[1] for x in ls]
if __name__ == "__main__":
    STAMP = False
    t, _ = build_multi()
    open("multi.s", "w").write(HEADER + t)
    STAMP = True
    t, _ = build_multi()
    open("multi_st.s", "w").write(t)
```

```python
import sys
from prog import *
from layout import *
from asmlib import make_file
import stamps

STAMP = False
def f2u(x):
    import struct
    return struct.unpack("<I", struct.pack("<f", x))[0]
def hx(x): return "0x%x" % (x & 0xffffffff)
LOG2E = 1.4426950408889634
def vr(b, n=4): return f"v[{b}:{b+n-1}]" if n > 1 else f"v{b}"
def ar(b, n=4): return f"a[{b}:{b+n-1}]" if n > 1 else f"a{b}"
WS = "s[8:11]"

def srd(a, s, ptr, size):
    a(f"s_mov_b32 s{s}, s{ptr}"); a(f"s_mov_b32 s{s+1}, s{ptr+1}"); a(f"s_mov_b32 s{s+2}, {hx(size)}"); a(f"s_mov_b32 s{s+3}, 0x20000")

def begin(a, nwg):
    a(f"s_cmp_ge_u32 s2, {nwg}"); a("s_cbranch_scc1 9f")
    if STAMP: stamps.stamp_begin(a)
    a("s_load_dwordx2 s[4:5], s[0:1], 72")
    a("v_and_b32 v1, 63, v0")
    a("v_lshrrev_b32 v2, 6, v0")
    a("v_lshlrev_b32 v4, 4, v1")
    a("v_readfirstlane_b32 s3, v2")
    srd(a, 8, 4, WS_SIZE)
def end(a):
    if STAMP:
        a("WAITALL"); a("s_barrier"); stamps.stamp_end(a, v=8)
    a("9:"); a("s_endpgm")

def sdiv(a, dst, src, d, rem=None):
    a(f"s_mul_i32 s{dst}, s{src}, {(1 << 20) // d + 1}"); a(f"s_lshr_b32 s{dst}, s{dst}, 20")
    if rem is not None:
        a(f"s_mul_i32 s{rem}, s{dst}, {d}"); a(f"s_sub_u32 s{rem}, s{src}, s{rem}")
def chk_div(d, n):
    m = (1 << 20) // d + 1
    assert all((x * m) >> 20 == x // d and x * m < 2**32 for x in range(n)), (d, n)

def unpack(a, dst, src, n):
    for i in range(n):
        a(f"v_lshlrev_b32 v{dst+2*i}, 16, v{src+i}")
        a(f"v_and_b32 v{dst+2*i+1}, 0xffff0000, v{src+i}")

def ln_stats(a, T, tmp, lds_off):
    s1, s2 = tmp, tmp + 1
    a(f"v_add_f32 v{s1}, v{T}, v{T+1}"); a(f"v_add_f32 v{tmp+2}, v{T+2}, v{T+3}")
    a(f"v_mul_f32 v{s2}, v{T}, v{T}"); a(f"v_mul_f32 v{tmp+3}, v{T+1}, v{T+1}")
    a(f"v_fmac_f32 v{s2}, v{T+2}, v{T+2}"); a(f"v_fmac_f32 v{tmp+3}, v{T+3}, v{T+3}")
    for i in range(4, 24, 2):
        a(f"v_add_f32 v{s1}, v{s1}, v{T+i}"); a(f"v_add_f32 v{tmp+2}, v{tmp+2}, v{T+i+1}")
        a(f"v_fmac_f32 v{s2}, v{T+i}, v{T+i}"); a(f"v_fmac_f32 v{tmp+3}, v{T+i+1}, v{T+i+1}")
    a(f"v_add_f32 v{s1}, v{s1}, v{tmp+2}"); a(f"v_add_f32 v{s2}, v{s2}, v{tmp+3}")
    a(f"v_permlane16_swap_b32 v{s1}, v{s2}")
    a(f"v_add_f32 v{s1}, v{s1}, v{s2}")
    a(f"v_add_f32_dpp v{s1}, v{s1}, v{s1} row_ror:8 row_mask:0xf bank_mask:0xf")
    a(f"v_mov_b32 v{s2}, v{s1}")
    a(f"v_permlane32_swap_b32 v{s1}, v{s2}")
    a(f"v_add_f32 v{s1}, v{s1}, v{s2}")
    a(f"v_and_b32 v{tmp+2}, 7, v1"); a(f"v_lshlrev_b32 v{tmp+2}, 4, v{tmp+2}")
    if lds_off: a(f"v_add_u32 v{tmp+2}, {lds_off}, v{tmp+2}"); lds_off = 0
    a(f"v_bfe_u32 v{tmp+3}, v1, 4, 1"); a(f"v_lshl_add_u32 v{tmp+3}, v{tmp+3}, 7, v{tmp+2}")
    a(f"v_lshl_add_u32 v{tmp+3}, s3, 2, v{tmp+3}")
    a(f"ds_write_b32 v{tmp+3}, v{s1} offset:{lds_off}", "lnw")
    a("WAITTAG lnw"); a("s_barrier")
    a(f"ds_read_b128 {vr(tmp+4)}, v{tmp+2} offset:{lds_off}")
    a(f"ds_read_b128 {vr(tmp+8)}, v{tmp+2} offset:{lds_off+128}")
    a(f"v_add_f32 v{s1}, v{tmp+4}, v{tmp+5}"); a(f"v_add_f32 v{s2}, v{tmp+8}, v{tmp+9}")
    a(f"v_add_f32 v{s1}, v{s1}, v{tmp+6}"); a(f"v_add_f32 v{s2}, v{s2}, v{tmp+10}")
    a(f"v_mul_f32 v{s1}, {hx(f2u(1/576))}, v{s1}")
    a(f"v_mul_f32 v{s2}, {hx(f2u(1/576))}, v{s2}")
    a(f"v_fma_f32 v{s2}, -v{s1}, v{s1}, v{s2}")
    a(f"v_max_f32 v{s2}, 0, v{s2}")
    a(f"v_add_f32 v{s2}, {hx(f2u(1e-5))}, v{s2}")

def ln_write(a, T, tmp, out, vaddr, sXN, mu_add, vstaddr, sST):
    m, v = tmp, tmp + 1
    a(f"v_rsq_f32 v{tmp+2}, v{v}")
    a(f"v_sqrt_f32 v{tmp+5}, v{v}")
    if mu_add is not None: a(f"v_add_f32 v{tmp+4}, v{m}, v{mu_add}")
    else: a(f"v_mov_b32 v{tmp+4}, v{m}")
    a(f"v_mul_f32 v{tmp+3}, v{m}, v{tmp+2}")
    for i in range(3):
        for e in range(8): a(f"v_fma_f32 v{T+8*i+e}, v{T+8*i+e}, v{tmp+2}, -v{tmp+3}")
        for e in range(4): a(f"v_cvt_pk_bf16_f32 v{out+4*i+e}, v{T+8*i+2*e}, v{T+8*i+2*e+1}")
        a(f"buffer_store_dwordx4 {vr(out+4*i)}, v{vaddr}, {WS}, s{sXN} offen offset:{2048*i if i < 2 else 0} sc1")
        if i == 1: a(f"s_add_u32 s{sXN}, s{sXN}, 4096")
    a(f"buffer_store_dwordx4 {vr(tmp+4)}, v{vstaddr}, {WS}, s{sST} offen sc1")

def tokgroup_addr(a, sG):
    a(f"s_lshr_b32 s20, s{sG}, 1"); a(f"s_mul_i32 s20, s20, {72*256}")
    a(f"s_and_b32 s21, s{sG}, 1"); a("s_lshl_b32 s21, s21, 7"); a("s_add_u32 s20, s20, s21")
    a(f"s_mul_i32 s21, s3, {24*256}"); a("s_add_u32 s20, s20, s21")
    a("s_cmp_eq_u32 s3, 3"); a(f"s_cselect_b32 s20, {hx(OOB)}, s20")
    a("v_and_b32 v7, 7, v1"); a("v_lshrrev_b32 v6, 3, v1"); a("v_lshlrev_b32 v6, 8, v6")
    a("v_lshl_add_u32 v5, v7, 4, v6"); a("v_add_u32 v5, s20, v5")
    a(f"s_lshl_b32 s21, s{sG}, 6"); a("v_lshl_add_u32 v7, v7, 3, s21")
    a(f"v_mov_b32 v6, {hx(OOB)}"); a("v_cmp_gt_u32 vcc, 8, v0"); a("v_cndmask_b32 v6, v6, v7, vcc")

def xcd_split(a, sx, ss):
    a(f"s_and_b32 s{sx}, s2, 7"); a(f"s_lshr_b32 s{ss}, s2, 3")

N_WO, N_LN, N_WQ, N_GU, N_WD = 72, 256, 252, 324, 162
def k0(zero_flags=None, code=None):
    a = Prog(); tot = N_WO + N_LN + N_WQ + N_GU + N_WD
    begin(a, tot)
    a("s_load_dwordx4 s[24:27], s[0:1], 0")
    a("s_load_dwordx2 s[28:29], s[0:1], 16")
    a("s_load_dwordx4 s[32:35], s[0:1], 32")
    a("s_load_dwordx2 s[36:37], s[0:1], 48")
    a("v_and_b32 v2, 7, v1"); a("v_lshrrev_b32 v3, 3, v1")
    a("s_mov_b32 s40, 0x05040100"); a("s_mov_b32 s41, 0x07060302")
    a("WAITALL")
    a(f"s_cmp_lt_u32 s2, {N_WO}"); a("s_cbranch_scc1 L0_wo")
    a(f"s_cmp_lt_u32 s2, {N_WO+N_LN}"); a("s_cbranch_scc1 L0_ln")
    a(f"s_cmp_lt_u32 s2, {N_WO+N_LN+N_WQ}"); a("s_cbranch_scc1 L0_wq")
    a(f"s_cmp_lt_u32 s2, {N_WO+N_LN+N_WQ+N_GU}"); a("s_cbranch_scc1 L0_gu")
    R = 16; O = 48
    def perms(i, nd=4):
        for m in range(4):
            a(f"v_perm_b32 v{O+4*i+m}, v{R+nd*(2*m+1)+(i>>1)}, v{R+nd*(2*m)+(i>>1)}, s{40+(i&1)}")
    a(f"s_sub_u32 s16, s2, {N_WO+N_LN+N_WQ+N_GU}"); a("s_lshl_b32 s16, s16, 2"); a("s_add_u32 s16, s16, s3")
    chk_div(9, 648); chk_div(18, 72)
    sdiv(a, 17, 16, 9, 18)
    a("s_and_b32 s19, s17, 1"); a("s_lshr_b32 s17, s17, 1")
    sdiv(a, 20, 17, 9, 21)
    srd(a, 12, 36, 4608 * 576 * 2)
    a("s_mul_i32 s22, s20, 72"); a("s_mul_i32 s23, s19, 36"); a("s_add_u32 s22, s22, s23"); a("s_add_u32 s22, s22, s21")
    a("v_lshrrev_b32 v5, 1, v3"); a("v_mad_u32_u24 v5, v5, 9, s22")
    a("v_lshrrev_b32 v6, 2, v5"); a("v_lshlrev_b32 v6, 6, v6"); a("v_and_b32 v5, 3, v5"); a("v_lshl_add_u32 v6, v5, 1, v6")
    a("v_and_b32 v5, 1, v3"); a("v_add_u32 v6, v6, v5")
    a("v_mul_u32_u24 v6, 1152, v6")
    a("s_mul_i32 s22, s20, 36"); a("s_add_u32 s22, s22, s21"); a(f"s_mul_i32 s22, s22, {CH}")
    a(f"s_mul_i32 s23, s19, {18*1024}"); a("s_add_u32 s22, s22, s23"); a(f"s_add_u32 s22, s22, {WD}")
    a("v_lshrrev_b32 v7, 2, v3"); a("v_lshlrev_b32 v7, 10, v7")
    a("v_and_b32 v8, 3, v3")
    a("s_cmp_eq_u32 s18, 8"); a("s_cbranch_scc1 L0_wd8")
    a("s_lshr_b32 s30, s18, 1"); a("s_and_b32 s31, s18, 1")
    a("s_mul_i32 s38, s30, 288"); a("s_lshl_b32 s39, s31, 7"); a("s_add_u32 s38, s38, s39")
    a("v_lshl_add_u32 v6, v2, 4, v6")
    for e in range(8):
        a(f"buffer_load_dwordx4 {vr(R+4*e)}, v6, s[12:15], s38 offen nt"); a(f"s_add_u32 s38, s38, {8*1152}")
    a(f"s_mul_i32 s30, s30, {9*CH}"); a("s_add_u32 s22, s22, s30"); a("s_lshl_b32 s31, s31, 13"); a("s_add_u32 s22, s22, s31")
    a("v_lshrrev_b32 v9, 2, v2"); a("v_lshl_add_u32 v7, v9, 12, v7")
    a("v_and_b32 v9, 3, v2"); a("v_lshl_add_u32 v9, v8, 2, v9")
    for j in range(4):
        a(f"v_add_u32 v{10+j}, {4*j}, v9"); a(f"v_and_b32 v{10+j}, 15, v{10+j}"); a(f"v_lshl_add_u32 v{10+j}, v{10+j}, 4, v7")
    for i in range(8):
        perms(i)
        a(f"buffer_store_dwordx4 {vr(O+4*i)}, v{10+(i&3)}, {WS}, s22 offen offset:{(i>>2)*2048 + (i&3)*256} sc1")
    a("s_branch L0_end")
    a("L0_wd8:")
    a("v_lshrrev_b32 v9, 1, v2"); a("v_and_b32 v10, 1, v2")
    a("v_mul_u32_u24 v11, 288, v9"); a("v_lshl_add_u32 v11, v10, 4, v11"); a("v_add_u32 v6, v6, v11")
    a("s_mov_b32 s38, 256")
    for e in range(8):
        a(f"buffer_load_dwordx4 {vr(R+4*e)}, v6, s[12:15], s38 offen nt"); a(f"s_add_u32 s38, s38, {8*1152}")
    a(f"s_add_u32 s22, s22, {16*1024}")
    a(f"v_mul_u32_u24 v9, {9*CH}, v9"); a("v_add_u32 v7, v7, v9")
    a("v_lshl_add_u32 v10, v8, 1, v10"); a("v_xor_b32 v11, 4, v10")
    a("v_lshl_add_u32 v10, v10, 4, v7"); a("v_lshl_add_u32 v11, v11, 4, v7")
    for i in range(8):
        perms(i)
        a(f"buffer_store_dwordx4 {vr(O+4*i)}, v{10+((i>>1)&1)}, {WS}, s22 offen offset:{i*128} sc1")
    a("s_branch L0_end")
    a("L0_gu:")
    a(f"s_sub_u32 s16, s2, {N_WO+N_LN+N_WQ}"); a("s_lshl_b32 s16, s16, 2"); a("s_add_u32 s16, s16, s3")
    chk_div(72, 1296)
    sdiv(a, 17, 16, 72, 18)
    a("s_and_b32 s19, s17, 1"); a("s_lshr_b32 s20, s17, 1")
    a("s_cmp_eq_u32 s19, 0"); a("s_cselect_b32 s12, s32, s34"); a("s_cselect_b32 s13, s33, s35")
    a(f"s_mov_b32 s14, {576*4608*2}"); a("s_mov_b32 s15, 0x20000")
    a(f"v_mul_u32_u24 v6, {8*9216}, v3"); a("v_lshl_add_u32 v6, v2, 4, v6")
    a(f"s_mul_i32 s38, s20, {64*9216}"); a("s_lshl_b32 s39, s18, 7"); a("s_add_u32 s38, s38, s39")
    for e in range(8):
        a(f"buffer_load_dwordx4 {vr(R+4*e)}, v6, s[12:15], s38 offen nt"); a(f"s_add_u32 s38, s38, 9216")
    a("v_lshlrev_b32 v7, 8, v3"); a("v_lshl_add_u32 v7, v2, 4, v7")
    a(f"s_mul_i32 s22, s18, {4*CH}"); a("s_lshl_b32 s23, s17, 11"); a("s_add_u32 s22, s22, s23"); a(f"s_add_u32 s22, s22, {WGU}")
    for i in range(8):
        perms(i)
        a(f"buffer_store_dwordx4 {vr(O+4*i)}, v7, {WS}, s22 offen offset:{(i&1)*128} sc1")
        if i & 1: a(f"s_add_u32 s22, s22, {CH}")
    a("s_branch L0_end")
    a("L0_wq:")
    a(f"s_sub_u32 s16, s2, {N_WO+N_LN}"); a("s_lshl_b32 s16, s16, 2"); a("s_add_u32 s16, s16, s3")
    chk_div(7, 1008); chk_div(16, 144)
    sdiv(a, 17, 16, 7, 18)
    a("s_and_b32 s19, s17, 15"); a("s_lshr_b32 s20, s17, 4")
    srd(a, 12, 26, 576 * 1728 * 2)
    a("s_cmp_lt_u32 s18, 6"); a("s_cselect_b64 vcc, -1, 0")
    a("v_mov_b32 v5, s18"); a("v_cndmask_b32 v5, v2, v5, vcc")
    a("v_lshlrev_b32 v6, 1, v2"); a("v_cndmask_b32 v6, 16, v6, vcc")
    a("v_lshrrev_b32 v7, 1, v5"); a("v_add_u32 v7, 1, v7"); a("v_mul_u32_u24 v8, 576, v7")
    a("v_cmp_gt_u32 vcc, 3, v7"); a("v_cndmask_b32 v8, 0, v8, vcc")
    a("v_and_b32 v9, 1, v5"); a("v_mad_u32_u24 v8, v9, 18, v8"); a("v_add_u32 v6, v6, v8")
    a("v_lshlrev_b32 v6, 1, v6"); a(f"v_mul_u32_u24 v8, {8*3456}, v3"); a("v_add_u32 v6, v6, v8")
    a(f"v_mov_b32 v8, {hx(OOB)}"); a("v_cmp_gt_u32 vcc, 6, v5"); a("v_cndmask_b32 v6, v8, v6, vcc")
    a(f"s_mul_i32 s38, s20, {64*3456}"); a("s_mul_i32 s39, s19, 72"); a("s_add_u32 s38, s38, s39")
    for e in range(8):
        a(f"buffer_load_dword v{R+e}, v6, s[12:15], s38 offen nt"); a(f"s_add_u32 s38, s38, 3456")
    a("v_lshlrev_b32 v7, 8, v3"); a("v_lshl_add_u32 v7, v2, 4, v7")
    a("s_min_u32 s21, s18, 4"); a("s_lshl_b32 s21, s21, 1"); a("s_mul_i32 s22, s20, 10"); a("s_add_u32 s22, s22, s21")
    a("s_lshl_b32 s23, s20, 1"); a("s_add_u32 s23, s23, s18"); a("s_lshl_b32 s23, s23, 1"); a("s_add_u32 s23, s23, 82")
    a("s_lshr_b32 s21, s18, 1"); a("s_cmp_eq_u32 s21, 2"); a("s_cselect_b32 s22, s23, s22")
    a("s_lshl_b32 s22, s22, 10"); a(f"s_mul_i32 s23, s19, {WQ_P}"); a("s_add_u32 s22, s22, s23")
    if WQ: a(f"s_add_u32 s22, s22, {WQ}")
    for i in range(2):
        perms(i, nd=1)
        a(f"buffer_store_dwordx4 {vr(O+4*i)}, v7, {WS}, s22 offen offset:{i*128} sc1")
    a("s_branch L0_end")
    a("L0_wo:")
    srd(a, 12, 28, 576 * 576 * 2)
    a("s_lshr_b32 s16, s2, 2"); a("s_and_b32 s17, s2, 3")
    a("s_cmp_lt_u32 s16, 16"); a("s_cbranch_scc0 L0_wo_b")
    a("s_mul_i32 s18, s16, 36"); a("s_and_b32 s19, s17, 1"); a("s_lshl_b32 s19, s19, 3"); a("s_add_u32 s18, s18, s19")
    a("s_lshr_b32 s19, s17, 1"); a("s_add_u32 s18, s18, s19")
    for e in range(8): a(f"s_add_u32 s{48+e}, s18, {18*(e>>2) + 2*(e&3)}")
    a("s_branch L0_wo_c")
    a("L0_wo_b:")
    a("s_sub_u32 s18, s16, 16"); a("s_lshl_b32 s18, s18, 4"); a("s_add_u32 s18, s18, s17"); a("s_mul_i32 s18, s18, 18")
    for e in range(8): a(f"s_add_u32 s{48+e}, s18, {72*(e>>1) + 16 + (e&1)}")
    a("L0_wo_c:")
    for e in range(8): a(f"s_mul_i32 s{48+e}, s{48+e}, 1152")
    X = 16
    a("v_and_b32 v5, 15, v0")
    a("v_lshrrev_b32 v6, 2, v5"); a("v_and_b32 v7, 3, v5"); a("v_lshl_add_u32 v6, v6, 3, v7")
    a("v_add_u32 v7, 128, v5")
    a("s_lshl_b32 s20, s16, 10"); a("s_lshl_b32 s21, s17, 8"); a("s_add_u32 s20, s20, s21"); a(f"s_add_u32 s20, s20, {WO}")
    for rd in range(3):
        a("v_lshrrev_b32 v8, 4, v0")
        if rd: a(f"v_add_u32 v8, {16*rd}, v8")
        a("v_mul_u32_u24 v9, 57, v8"); a("v_lshrrev_b32 v9, 9, v9")
        assert all((T * 57) >> 9 == T // 9 for T in range(48))
        a("v_mul_u32_u24 v10, 9, v9"); a("v_sub_u32 v10, v8, v10")
        a("v_lshrrev_b32 v11, 1, v10"); a("v_lshl_add_u32 v11, v11, 5, v6"); a("v_and_b32 v12, 1, v10"); a("v_lshl_add_u32 v11, v12, 2, v11")
        a("v_cmp_gt_u32 vcc, 8, v10"); a("v_cndmask_b32 v11, v7, v11, vcc")
        a("v_mul_u32_u24 v9, 144, v9"); a("v_add_lshl_u32 v11, v9, v11, 1")
        a(f"v_mov_b32 v12, {hx(OOB)}")
        a(f"v_mul_u32_u24 v{13+rd}, {18*1024}, v8"); a(f"v_lshl_add_u32 v{13+rd}, v5, 4, v{13+rd}")
        if rd == 2:
            a("v_cmp_gt_u32 vcc, 36, v8"); a("v_cndmask_b32 v11, v12, v11, vcc")
            a("v_cmp_gt_u32 vcc, 37, v8"); a(f"v_cndmask_b32 v15, v12, v15, vcc")
        for e in range(8): a(f"buffer_load_ushort v{X+8*rd+e}, v11, s[12:15], s{48+e} offen")
    for i in range(24): a(f"v_lshlrev_b32 v{X+i}, 16, v{X+i}")
    S = 48
    for e in range(8):
        a(f"v_add_f32 v{S+e}, v{X+e}, v{X+8+e}"); a(f"v_add_f32 v{S+e}, v{S+e}, v{X+16+e}")
    for sh in (1, 2, 4, 8):
        for e in range(8): a(f"v_add_f32_dpp v{S+e}, v{S+e}, v{S+e} row_ror:{sh} row_mask:0xf bank_mask:0xf")
    a("v_lshrrev_b32 v8, 4, v0"); a("v_lshlrev_b32 v8, 5, v8")
    a(f"ds_write_b128 v8, {vr(S)}", "w"); a(f"ds_write_b128 v8, {vr(S+4)} offset:16", "w")
    a("WAITTAG w"); a("s_barrier")
    a("v_lshlrev_b32 v8, 5, v5")
    a(f"ds_read_b128 {vr(S)}, v8"); a(f"ds_read_b128 {vr(S+4)}, v8 offset:16")
    for sh in (1, 2, 4, 8):
        for e in range(8): a(f"v_add_f32_dpp v{S+e}, v{S+e}, v{S+e} row_ror:{sh} row_mask:0xf bank_mask:0xf")
    for e in range(8): a(f"v_mul_f32 v{S+e}, {hx(f2u(1/576))}, v{S+e}")
    for i in range(24): a(f"v_sub_f32 v{X+i}, v{X+i}, v{S+(i&7)}")
    Hh = 56
    for m in range(4): a(f"v_cvt_pk_bf16_f32 v{Hh+m}, v{S+2*m}, v{S+2*m+1}")
    unpack(a, 64, Hh, 4)
    a("v_cmp_eq_u32 s[42:43], 64, v0"); a("v_mov_b32 v9, 65"); a("v_cmp_eq_u32 s[44:45], v9, v0"); a("v_cmp_gt_u32 vcc, 64, v0")
    for e in range(8):
        a(f"v_sub_f32 v{64+e}, v{S+e}, v{64+e}")
        a(f"v_cndmask_b32 v{X+16+e}, 0, v{X+16+e}, vcc")
        a(f"v_cndmask_b32 v{X+16+e}, v{X+16+e}, v{S+e}, s[42:43]")
        a(f"v_cndmask_b32 v{X+16+e}, v{X+16+e}, v{64+e}, s[44:45]")
    for rd in range(3):
        for m in range(4): a(f"v_cvt_pk_bf16_f32 v{72+4*rd+m}, v{X+8*rd+2*m}, v{X+8*rd+2*m+1}")
        a(f"buffer_store_dwordx4 {vr(72+4*rd)}, v{13+rd}, {WS}, s20 offen sc1")
    a("s_branch L0_end")
    a("L0_ln:")
    a(f"s_sub_u32 s16, s2, {N_WO}"); a("s_and_b32 s17, s16, 7"); a("s_lshl_b32 s17, s17, 5"); a("s_lshr_b32 s18, s16, 3"); a("s_add_u32 s17, s17, s18")
    srd(a, 12, 24, 2048 * 576 * 2)
    a("v_mul_u32_u24 v8, 1152, v3"); a("v_lshl_add_u32 v8, v2, 4, v8")
    a(f"s_mul_i32 s18, s17, {8*1152}"); a("s_mul_i32 s19, s3, 384"); a("s_add_u32 s18, s18, s19")
    a("s_cmp_eq_u32 s3, 3"); a(f"s_cselect_b32 s18, {hx(OOB)}, s18"); a("v_add_u32 v8, s18, v8")
    for i in range(3): a(f"buffer_load_dwordx4 {vr(16+4*i)}, v8, s[12:15], 0 offen offset:{128*i} nt")
    if code:
        a("s_getpc_b64 s[52:53]"); a("L0_pc:")
        a(f"s_add_u32 s52, s52, {code}-L0_pc"); a("s_addc_u32 s53, s53, 0")
        a("s_bfe_u32 s54, s16, 0x10003"); a("s_lshl_b32 s54, s54, 15"); a("v_lshlrev_b32 v90, 7, v0"); a("v_add_u32 v90, s54, v90")
        a("v_min_u32 v90, 0xc400, v90")
        a("global_load_dword v91, v90, s[52:53]")
    a("s_lshr_b32 s18, s16, 7"); a(f"s_mul_i32 s18, s18, {LBS}"); a("s_and_b32 s19, s16, 127"); a(f"s_mul_i32 s19, s19, {22*16}")
    a("s_add_u32 s18, s18, s19"); a(f"s_add_u32 s18, s18, {LB0+KV}")
    a("v_subrev_u32 v9, 192, v0"); a("v_cmp_gt_u32 vcc, 22, v9"); a(f"v_mov_b32 v10, {hx(OOB)}"); a("v_cndmask_b32 v9, v10, v4, vcc")
    for i in range(4): a(f"v_mov_b32 v{12+i}, 0")
    a(f"buffer_store_dwordx4 v[12:15], v9, {WS}, s18 offen sc1")
    if zero_flags:
        a("s_lshl_b32 s18, s16, 13"); a(f"s_add_u32 s18, s18, {zero_flags[0]}")
        a("v_lshlrev_b32 v9, 4, v0")
        a(f"buffer_store_dwordx4 v[12:15], v9, {WS}, s18 offen sc1"); a("s_add_u32 s18, s18, 4096")
        a(f"buffer_store_dwordx4 v[12:15], v9, {WS}, s18 offen sc1")
    tokgroup_addr(a, 17)
    a("v_lshlrev_b32 v9, 5, v2"); a("v_lshl_add_u32 v9, v3, 2, v9")
    for i in range(12): a(f"ds_bpermute_b32 v{32+i}, v9, v{16+i}")
    unpack(a, 48, 32, 12)
    ln_stats(a, 48, 72, 0)
    a(f"s_mov_b32 s22, {LB0+XN}"); a(f"s_mov_b32 s23, {LB0+ST}")
    ln_write(a, 48, 72, 16, 5, 22, None, 6, 23)
    a("L0_end:")
    end(a)
    return a, tot

def mf(d, A, B, c): return f"v_mfma_f32_16x16x32_bf16 {d}, {A}, {B}, {c}"

def phi_ops(src, dst, tmp):
    o = []
    n = len(src)
    for i in range(n): o.append(f"v_mul_f32 v{tmp[i]}, {hx(f2u(LOG2E))}, v{src[i]}")
    for i in range(n): o.append(f"v_min_f32 v{tmp[i]}, 0, v{tmp[i]}")
    for i in range(n):
        o.append(f"v_exp_f32 v{tmp[i]}, v{tmp[i]}")
        o.append(f"v_max_f32 v{dst[i]}, 0, v{src[i]}")
    for i in range(n): o.append(f"v_add_f32 v{tmp[i]}, {hx(f2u(1e-6))}, v{tmp[i]}")
    for i in range(n): o.append(f"v_add_f32 v{dst[i]}, v{dst[i]}, v{tmp[i]}")
    return o

def ka(l):
    a = Prog(); begin(a, 256)
    LB = LB0 + l * LBS
    xcd_split(a, 16, 17)
    a("s_lshr_b32 s18, s17, 4"); a("s_lshl_b32 s16, s16, 1"); a("s_add_u32 s16, s16, s18")
    a("s_and_b32 s17, s17, 15")
    a("s_lshl_b32 s18, s16, 2"); a("s_add_u32 s18, s18, s3")
    a(f"s_mul_i32 s20, s18, {2*72*256}"); a(f"s_add_u32 s20, s20, {LB+XN}"); a(f"s_add_u32 s21, s20, {72*256}")
    a(f"s_mul_i32 s22, s17, {WQ_P}"); a("s_lshl_b32 s23, s3, 12"); a("s_add_u32 s22, s22, s23")
    if WQ: a(f"s_add_u32 s22, s22, {WQ}")
    a("v_add_u32 v5, 0x10000, v4")
    X = lambda t, ks: ar((ks * 2 + t) * 4)
    def xload(ks):
        o = []
        for t in range(2):
            o.append(f"buffer_load_dwordx4 {X(t,ks)}, v4, {WS}, s{20+t} offen offset:{(ks&3)*1024}")
        if ks & 3 == 3: o += ["s_add_u32 s20, s20, 4096", "s_add_u32 s21, s21, 4096"]
        return o
    def wround(i):
        o = [f"s_add_u32 m0, s23, {i*16384}"]
        for j in range(4): o.append((f"buffer_load_dwordx4 v4, {WS}, s22 offen offset:{j*1024} lds", f"w{i}"))
        o.append("s_add_u32 s22, s22, 16384")
        return o
    xs = 0
    for i in range(8):
        a.ext(wround(i))
        while xs < 18 and xs < 3.2 * (i + 1):
            a.ext(xload(xs)); xs += 1
    KL = 131072
    a("v_lshrrev_b32 v9, 4, v0"); a("v_and_b32 v10, 15, v0")
    a("v_subrev_u32 v11, 160, v0"); a("v_lshrrev_b32 v12, 1, v11")
    a("v_cmp_gt_u32 s[42:43], 64, v11")
    a("v_cndmask_b32 v9, v9, v12, s[42:43]")
    a("v_lshlrev_b32 v12, 2, v9"); a("s_mov_b32 s24, 0xB3A266"); a("v_lshrrev_b32 v12, v12, s24"); a("v_and_b32 v12, 15, v12")
    a("v_lshrrev_b32 v13, v9, 50"); a("v_and_b32 v13, 1, v13")
    a("v_lshrrev_b32 v14, 2, v10"); a("v_lshlrev_b32 v14, 8, v14"); a("v_and_b32 v15, 3, v10"); a("v_lshl_add_u32 v14, v15, 2, v14")
    a("v_lshl_add_u32 v14, v13, 10, v14"); a("v_add_u32 v14, 2048, v14")
    a("v_and_b32 v15, 1, v0"); a("v_lshlrev_b32 v16, 9, v15"); a("v_lshl_add_u32 v16, v13, 2, v16"); a("v_add_u32 v16, 6144, v16")
    a("v_cndmask_b32 v14, v14, v16, s[42:43]"); a("v_lshl_add_u32 v14, v12, 4, v14")
    a("v_subrev_u32 v11, 96, v0"); a("v_lshrrev_b32 v16, 5, v11"); a("v_lshlrev_b32 v16, 9, v16"); a("v_bfe_u32 v17, v11, 1, 4"); a("v_lshl_add_u32 v16, v17, 4, v16")
    a("v_mul_u32_u24 v17, 1028, v15"); a("v_add3_u32 v16, v16, v17, 0"); a("v_add_u32 v16, 4096, v16")
    a("v_cmp_gt_u32 vcc, 64, v11"); a("v_cndmask_b32 v6, v14, v16, vcc")
    a("v_and_b32 v6, 0x1fff, v6"); a(f"v_add_u32 v6, {KL}, v6")
    a("s_mul_i32 s24, s3, 7168"); a(f"s_add_u32 s24, s24, {KL}"); a("v_add_u32 v7, s24, v4")
    a("v_lshlrev_b32 v9, 2, v0"); a(f"v_add_u32 v8, {KL}, v9")
    a(f"v_mov_b32 v11, {hx(OOB)}"); a("v_cmp_gt_u32 vcc, 172, v0"); a("v_cndmask_b32 v10, v11, v9, vcc")
    a("v_and_b32 v12, 7, v1"); a("v_cmp_gt_u32 s[44:45], 2, v12"); a("v_and_b32 v12, 15, v1"); a("v_cmp_eq_u32 s[46:47], 6, v12")
    a("v_lshrrev_b32 v13, 5, v1"); a("v_lshl_add_u32 v13, v13, 4, v12"); a("v_lshlrev_b32 v13, 3, v13")
    a("v_and_b32 v14, 16, v1"); a("v_cmp_ne_u32 vcc, 0, v14"); a("v_cndmask_b32 v11, v11, v13, vcc")
    a(f"s_mul_i32 s25, s17, {KV_P}"); a(f"s_add_u32 s25, s25, {LB+KV}")
    a("s_lshl_b32 s26, s18, 15"); a("s_lshl_b32 s27, s17, 10"); a("s_add_u32 s26, s26, s27"); a(f"s_add_u32 s26, s26, {LB+PQM}"); a("s_add_u32 s28, s26, 16384")
    a("s_lshl_b32 s27, s18, 4"); a("s_add_u32 s27, s27, s17"); a("s_lshl_b32 s27, s27, 8"); a(f"s_add_u32 s27, s27, {LB+PQL}")

    ACC1 = 16; ACC2 = 56; WB = 80; NB = 12; OP = 128; TM = 148; KD = 164; GA = 192
    acc1 = lambda s, t: ACC1 + (s * 2 + t) * 4
    acc2 = lambda s, t: ACC2 + (s * 2 + t) * 4
    seq = []
    for kp in range(9):
        for s in range(5): seq.append((1, s, kp, [kp * 10 + s * 2, kp * 10 + s * 2 + 1]))
    for kp in range(9):
        for s, F in enumerate((4, 5, 6)): seq.append((2, s, kp, [wq_frag(F, 2 * kp), wq_frag(F, 2 * kp + 1)]))
    frs = [f for x in seq for f in x[3]]
    have = [-1]
    def rd(i):
        f = frs[i]; o = []
        r = f // 16
        if r > have[0]:
            r2 = min(7, r | 1) if r else 0
            o += [f"WAITTAG w{r2}", "s_barrier"]; have[0] = r2
        o.append(f"ds_read_b128 {vr(WB + 4*(i % NB))}, {'v5' if f >= 64 else 'v4'} offset:{(f % 64) * 1024}")
        return o
    RD = 8
    for i in range(RD): a.ext(rd(i))
    slots = []
    for gi, (ps, s, kp, _) in enumerate(seq):
        w = [vr(WB + 4 * ((2 * gi + kk) % NB)) for kk in range(2)]
        for t in range(2):
            for kk in range(2):
                ks = 2 * kp + kk
                d = vr(acc1(s, t) if ps == 1 else acc2(s, t)); c = d if ks else "0"
                m = mf(d, X(t, ks), w[kk], c) if ps == 1 else mf(d, w[kk], X(t, ks), c)
                pre = [f"NEED {w[0]}, {w[1]}"] if (t == 0 and kk == 0) else []
                post = []
                if kk == 1 and 2 * gi + RD + t < len(frs): post = rd(2 * gi + RD + t)
                slots.append([pre, m, post])
    f = []
    for s in range(2):
        src = [acc1(s, 0) + j for j in range(8)]
        f += phi_ops(src, src, [TM + j for j in range(8)])
    src = [acc1(4, 0) + j for j in range(8)]
    f += phi_ops(src, [TM + 8 + j for j in range(8)], [TM + j for j in range(8)])
    for j in range(8): f.append(f"v_cndmask_b32 v{src[j]}, v{src[j]}, v{TM+8+j}, s[44:45]")
    for j in range(8): f.append(f"v_cndmask_b32 v{src[j]}, v{src[j]}, 1.0, s[46:47]")
    for s in range(5):
        for m in range(4): f.append(f"v_cvt_pk_bf16_f32 v{OP+4*s+m}, v{acc1(s,0)+2*m}, v{acc1(s,0)+2*m+1}")
    for i, (x, y) in enumerate([(0, 2), (1, 3), (0, 4), (1, 4), (4, 2), (4, 3), (4, 4)]):
        f.append(mf(vr(KD + 4 * i), vr(OP + 4 * x), vr(OP + 4 * y), "0"))
    n1 = 45 * 4
    left = place(slots, f, 3, start=n1 + 3, end=len(slots) - 8)
    f = [(f"ds_write_b128 v7, {vr(KD+4*i)} offset:{i*1024}", "kvw") for i in range(7)]
    place(slots, f, 3, start=len(slots) - 4)
    a.ext(flat(slots))
    a("WAITTAG kvw"); a("s_barrier")
    for o, (ad, off) in enumerate([("v8", 0), ("v8", 1024), ("v6", 0)]):
        for w in range(4): a(f"ds_read_b32 v{GA+4*o+w}, {ad} offset:{off + 7168*w}")
    qs = [acc2(s, 0) + j for s in range(2) for j in range(8)] + [acc2(2, t) + j for t in range(2) for j in range(2)]
    ph = phi_ops(qs, qs, [WB + j for j in range(20)])
    a.ext(ph[:20])
    for o in range(3):
        a(f"v_add_f32 v{GA+4*o}, v{GA+4*o}, v{GA+4*o+1}"); a(f"v_add_f32 v{GA+4*o+2}, v{GA+4*o+2}, v{GA+4*o+3}")
        a(f"v_add_f32 v{GA+4*o}, v{GA+4*o}, v{GA+4*o+2}")
        a(f"buffer_atomic_add_f32 v{GA+4*o}, {'v10' if o == 2 else 'v9'}, {WS}, s25 offen offset:{1024*o}")
    a.ext(ph[20:])
    for t in range(2):
        for s in range(2):
            for m in range(2): a(f"v_cvt_pk_bf16_f32 v{OP+4*t+2*s+m}, v{acc2(s,t)+2*m}, v{acc2(s,t)+2*m+1}")
        a(f"buffer_store_dwordx4 {vr(OP+4*t)}, v4, {WS}, s{26+2*t} offen sc1")
    for t in range(2): a(f"v_cvt_pk_bf16_f32 v{OP+8+t}, v{acc2(2,t)}, v{acc2(2,t)+1}")
    a(f"buffer_store_dwordx2 {vr(OP+8,2)}, v11, {WS}, s27 offen sc1")
    end(a)
    return a

def kb(l):
    a = Prog(); begin(a, 256)
    LB = LB0 + l * LBS
    xcd_split(a, 16, 17)
    a("s_lshl_b32 s16, s16, 3"); a("s_lshr_b32 s18, s17, 2"); a("s_add_u32 s16, s16, s18")
    a("s_and_b32 s17, s17, 3")
    a("v_and_b32 v2, 15, v1"); a("v_lshrrev_b32 v3, 4, v1")
    a(f"v_mov_b32 v15, {hx(OOB)}")
    a(f"s_mul_i32 s20, s3, {4*KV_P}"); a(f"s_add_u32 s20, s20, {LB+KV}")
    a("v_and_b32 v5, 3, v2"); a("v_bfe_u32 v6, v2, 2, 1"); a("v_lshl_add_u32 v7, v6, 1, v5")
    a("v_cmp_gt_u32 s[42:43], 2, v5"); a("v_cndmask_b32 v7, v7, v5, s[42:43]")
    a("v_cndmask_b32 v6, v6, v5, s[42:43]"); a("v_cmp_eq_u32 s[44:45], 0, v6")
    a("v_lshlrev_b32 v8, 6, v7"); a("v_lshl_add_u32 v8, v3, 4, v8")
    a("v_lshrrev_b32 v9, 1, v3"); a("v_lshlrev_b32 v10, 3, v7"); a("v_lshl_add_u32 v10, v9, 2, v10")
    a("v_cmp_gt_u32 vcc, 8, v2"); a("s_or_b64 s[46:47], vcc, s[42:43]"); a("s_orn2_b64 s[48:49], s[42:43], vcc")
    a("v_cndmask_b32 v11, v15, v8, s[46:47]"); a("v_cndmask_b32 v12, v15, v8, s[48:49]")
    a("v_cndmask_b32 v13, v15, v10, s[46:47]"); a("v_cndmask_b32 v14, v15, v10, s[48:49]")
    a("v_lshl_add_u32 v9, v9, 4, v2"); a("v_lshlrev_b32 v9, 3, v9")
    a("v_and_b32 v5, 1, v3"); a("v_cmp_eq_u32 s[50:51], 1, v5"); a("v_cndmask_b32 v10, v15, v9, s[50:51]")
    KVR = 16
    PQ = 80
    PL = 144
    a("s_lshl_b32 s21, s16, 15"); a("s_lshl_b32 s22, s3, 12"); a("s_add_u32 s21, s21, s22"); a(f"s_add_u32 s21, s21, {LB+PQM}"); a("s_add_u32 s22, s21, 16384")
    a("s_lshl_b32 s23, s16, 12"); a("s_lshl_b32 s24, s3, 10"); a("s_add_u32 s23, s23, s24"); a(f"s_add_u32 s23, s23, {LB+PQL}")
    for i in range(4):
        k = KVR + 16 * i
        a(f"buffer_load_dwordx4 {vr(k)}, v4, {WS}, s20 offen")
        a(f"buffer_load_dwordx4 {vr(k+4)}, v4, {WS}, s20 offen offset:1024")
        a(f"buffer_load_dwordx4 {vr(k+8)}, v{11+(i&1)}, {WS}, s20 offen offset:2048")
        a(f"buffer_load_dwordx2 {vr(k+12,2)}, v9, {WS}, s20 offen offset:{2048+384}")
        a(f"buffer_load_dword v{k+14}, v{13+(i&1)}, {WS}, s20 offen offset:{2048+640}")
        a(f"s_add_u32 s20, s20, {KV_P}")
        for t in range(2): a(f"buffer_load_dwordx4 {vr(PQ+16*i+8*t+2)}, v4, {WS}, s{21+t} offen offset:{1024*i}")
        a(f"buffer_load_dwordx2 {vr(PL+2*i,2)}, v10, {WS}, s23 offen offset:{256*i}")
    RS = 152; R8 = 160; SD = 164
    a(f"s_mul_i32 s24, s16, {2*72*256}"); a(f"s_mul_i32 s25, s17, {18*256}"); a("s_add_u32 s24, s24, s25")
    a("s_lshl_b32 s25, s3, 10"); a("s_add_u32 s26, s24, s25")
    a(f"s_add_u32 s28, s26, {LB+XN}"); a(f"s_add_u32 s29, s28, {72*256}")
    a(f"s_add_u32 s30, s24, {LB+XN+4096}"); a(f"s_add_u32 s31, s30, {72*256}")
    a("v_lshlrev_b32 v5, 1, v9"); a("v_and_b32 v6, 1, v3"); a("v_lshl_add_u32 v5, v6, 3, v5")
    a("s_cmp_eq_u32 s3, 0"); a("s_cselect_b64 vcc, -1, 0"); a("v_cndmask_b32 v5, v15, v5, vcc")
    a("s_lshl_b32 s32, s16, 8"); a(f"s_add_u32 s32, s32, {LB+ST+4}"); a("v_lshlrev_b32 v6, 3, v2")
    for t in range(2):
        a(f"buffer_load_dwordx4 {vr(RS+4*t)}, v4, {WS}, s{28+t} offen")
        a(f"buffer_load_dwordx2 {vr(R8+2*t,2)}, v5, {WS}, s{30+t} offen")
        a(f"buffer_load_dword v{SD+t}, v6, {WS}, s32 offen offset:{128*t}")
    a("s_mul_i32 s33, s17, 9"); a("s_lshl_b32 s34, s3, 1"); a("s_add_u32 s34, s34, s33"); a(f"s_mul_i32 s34, s34, {18*1024}"); a(f"s_add_u32 s34, s34, {WO}")
    a(f"s_add_u32 s35, s34, {18*1024}")
    a("s_add_u32 s36, s33, 8"); a("s_cmp_eq_u32 s3, 0"); a("s_cselect_b32 s36, s36, 36"); a(f"s_mul_i32 s36, s36, {18*1024}"); a(f"s_add_u32 s36, s36, {WO}")
    a("s_cmp_lt_u32 s3, 2"); a("s_cselect_b64 vcc, -1, 0"); a("v_cndmask_b32 v7, v15, v4, vcc")
    W = lambda n, ks: ar((ks * 3 + n) * 4)
    for ks in range(18):
        for n in range(3): a(f"buffer_load_dwordx4 {W(n,ks)}, {'v7' if n == 2 else 'v4'}, {WS}, s{34+n} offen offset:{(ks&3)*1024}")
        if ks & 3 == 3:
            for n in range(3): a(f"s_add_u32 s{34+n}, s{34+n}, 4096")
    AO = 168
    D = 200
    OU = 224
    for i in range(4):
        for t in range(2):
            a(f"v_mov_b32 v{PQ+16*i+8*t+1}, 0"); a(f"v_mov_b32 v{PQ+16*i+8*t+7}, 0")
    for s in range(2):
        for x in (1, 7, 9, 15): a(f"v_mov_b32 v{AO+16*s+x}, 0")
    a("s_lshl_b32 s37, s3, 13"); a("v_add_u32 v8, s37, v4")
    a("s_lshr_b32 s37, s3, 1"); a("s_lshl_b32 s37, s37, 11"); a("s_and_b32 s38, s3, 1"); a("s_lshl_b32 s38, s38, 3"); a("s_add_u32 s37, s37, s38")
    a("s_add_u32 s37, s37, 32768"); a("v_add_u32 v246, s37, v4")
    for i in range(4):
        k = KVR + 16 * i; A = AO + 16 * (i & 1)
        a(f"v_cvt_pk_bf16_f32 v{A+2}, v{k}, v{k+1}"); a(f"v_cvt_pk_bf16_f32 v{A+3}, v{k+2}, v{k+3}")
        a(f"v_cvt_pk_bf16_f32 v{A+4}, v{k+4}, v{k+5}"); a(f"v_cvt_pk_bf16_f32 v{A+5}, v{k+6}, v{k+7}")
        a(f"v_cvt_pk_bf16_f32 v{k+8}, v{k+8}, v{k+9}"); a(f"v_cvt_pk_bf16_f32 v{k+9}, v{k+10}, v{k+11}")
        a(f"v_cvt_pk_bf16_f32 v{A}, v{k+12}, 0"); a(f"v_cvt_pk_bf16_f32 v{A+6}, 0, v{k+13}")
        a(f"v_cvt_pk_bf16_f32 v{k+10}, v{k+14}, 0"); a(f"v_cvt_pk_bf16_f32 v{k+11}, 0, v{k+14}")
        a(f"v_cndmask_b32 v{A+10}, 0, v{k+8}, s[44:45]"); a(f"v_cndmask_b32 v{A+11}, 0, v{k+9}, s[44:45]")
        a(f"v_cndmask_b32 v{A+12}, v{k+8}, 0, s[44:45]"); a(f"v_cndmask_b32 v{A+13}, v{k+9}, 0, s[44:45]")
        a(f"v_cndmask_b32 v{A+8}, 0, v{k+10}, s[44:45]"); a(f"v_cndmask_b32 v{A+14}, v{k+11}, 0, s[44:45]")
        for t in range(2):
            b = PQ + 16 * i + 8 * t
            a(f"v_mov_b32 v{b}, v{PL+2*i+t}"); a(f"v_mov_b32 v{b+6}, v{PL+2*i+t}")
        for t in range(2):
            b = PQ + 16 * i + 8 * t; d = D + 12 * t
            a(mf(vr(d + 8), vr(A + 8), vr(b), "0")); a(mf(vr(d + 8), vr(A + 12), vr(b + 4), vr(d + 8)))
        for t in range(2):
            b = PQ + 16 * i + 8 * t; d = D + 12 * t
            a(mf(vr(d), vr(A), vr(b), "0")); a(mf(vr(d + 4), vr(A + 4), vr(b + 4), "0"))
        for t in range(2):
            d = D + 12 * t; r = 232 + 3 * t
            a(f"v_add_f32 v{r}, {hx(f2u(1e-6))}, v{d+8}"); a(f"v_add_f32 v{r+1}, {hx(f2u(1e-6))}, v{d+9}")
        for t in range(2):
            r = 232 + 3 * t
            a(f"v_rcp_f32 v{r}, v{r}"); a(f"v_rcp_f32 v{r+1}, v{r+1}")
        for t in range(2):
            d = D + 12 * t; r = 232 + 3 * t
            a(f"v_cndmask_b32 v{r+2}, v{r}, v{r+1}, s[50:51]")
            for j in range(8): a(f"v_mul_f32 v{d+j}, v{d+j}, v{r+(j>>2)}")
            for j in range(2):
                a(f"v_{'fmac' if i & 1 else 'mul'}_f32 v{238+2*t+j}, v{d+10+j}, v{r+2}")
            for m in range(4): a(f"v_cvt_pk_bf16_f32 v{OU+4*t+m}, v{d+2*m}, v{d+2*m+1}")
            a(f"ds_write_b128 v8, {vr(OU+4*t)} offset:{(2*i+t)*1024}", "ow")
            if i & 1: a(f"v_cvt_pk_bf16_f32 v{242+2*t+(i>>1)}, v{238+2*t}, v{238+2*t+1}")
    for t in range(2): a(f"ds_write_b64 v246, {vr(242+2*t,2)} offset:{t*1024}", "ow")
    a("WAITTAG ow"); a("s_barrier")
    OB = 16; NB = 12; AC = 72
    rd = lambda i: f"ds_read_b128 {vr(OB+4*(i%NB))}, v4 offset:{i*1024}"
    for i in range(8): a(rd(i))
    U = 96
    f = []
    for t in range(2):
        for m in range(4): f += [f"v_lshlrev_b32 v{U+12*t+2*m}, 16, v{RS+4*t+m}", f"v_and_b32 v{U+12*t+2*m+1}, 0xffff0000, v{RS+4*t+m}"]
        for m in range(2): f += [f"v_lshlrev_b32 v{U+12*t+8+2*m}, 16, v{R8+2*t+m}", f"v_and_b32 v{U+12*t+8+2*m+1}, 0xffff0000, v{R8+2*t+m}"]
    slots = []
    for kp in range(9):
        cnt = 0
        for t in range(2):
            for n in range(3):
                for kk in range(2):
                    ks = 2 * kp + kk; d = vr(AC + 12 * t + 4 * n)
                    post = []
                    if cnt % 3 == 2 and 4 * kp + 8 + cnt // 3 < 36: post = [rd(4 * kp + 8 + cnt // 3)]
                    slots.append([[], mf(d, W(n, ks), vr(OB + 4 * ((2 * ks + t) % NB)), d if ks else "0"), post]); cnt += 1
    place(slots, f, 2, start=4)
    a.ext(flat(slots))
    a(f"s_add_u32 s28, s26, {LB+Y1}"); a(f"s_add_u32 s29, s28, {72*256}"); a(f"s_add_u32 s30, s24, {LB+Y1+4096}")
    YO = 120; SQ = 132
    for t in range(2):
        for j in range(12): a(f"v_fma_f32 v{U+12*t+j}, v{U+12*t+j}, v{SD+t}, v{AC+12*t+j}")
        for m in range(4): a(f"v_cvt_pk_bf16_f32 v{YO+4*t+m}, v{U+12*t+2*m}, v{U+12*t+2*m+1}")
        a(f"buffer_store_dwordx4 {vr(YO+4*t)}, v4, {WS}, s{28+t} offen sc1")
        for m in range(2): a(f"v_cvt_pk_bf16_f32 v{YO+8+2*t+m}, v{U+12*t+8+2*m}, v{U+12*t+8+2*m+1}")
    a(f"v_permlane16_swap_b32 v{YO+8}, v{YO+10}"); a(f"v_permlane16_swap_b32 v{YO+9}, v{YO+11}")
    a("v_and_b32 v6, 1, v3"); a(f"v_mul_u32_u24 v6, {72*256}, v6"); a("v_lshl_add_u32 v6, v9, 1, v6")
    a("s_cmp_eq_u32 s3, 0"); a("s_cselect_b64 vcc, -1, 0"); a("v_cndmask_b32 v6, v15, v6, vcc")
    a(f"buffer_store_dwordx4 {vr(YO+8)}, v6, {WS}, s30 offen sc1")
    for t in range(2): a(f"v_add_f32 v{SQ+2+t}, v{U+12*t+8}, v{U+12*t+9}")
    for t in range(2):
        for j in range(4): a(f"v_cndmask_b32 v{U+12*t+8+j}, 0, v{U+12*t+8+j}, vcc")
    for t in range(2):
        a(f"v_mul_f32 v{SQ+t}, v{U+12*t}, v{U+12*t}")
    for j in range(1, 12):
        for t in range(2): a(f"v_fmac_f32 v{SQ+t}, v{U+12*t+j}, v{U+12*t+j}")
    a(f"v_permlane16_swap_b32 v{SQ+2}, v{SQ+3}")
    a(f"v_permlane16_swap_b32 v{SQ}, v{SQ+1}"); a(f"v_add_f32 v{SQ}, v{SQ}, v{SQ+1}")
    a(f"v_mov_b32 v{SQ+1}, v{SQ}"); a(f"v_permlane32_swap_b32 v{SQ}, v{SQ+1}"); a(f"v_add_f32 v{SQ}, v{SQ}, v{SQ+1}")
    a("v_lshlrev_b32 v6, 2, v1"); a("v_cmp_gt_u32 vcc, 32, v1"); a("v_cndmask_b32 v6, v15, v6, vcc")
    a("s_lshl_b32 s31, s17, 2"); a("s_add_u32 s31, s31, s3"); a("s_cmp_eq_u32 s31, 1"); a("s_cselect_b64 vcc, -1, 0"); a("v_cndmask_b32 v7, v15, v6, vcc")
    a("s_lshl_b32 s31, s31, 13"); a("s_lshl_b32 s32, s16, 7"); a("s_add_u32 s31, s31, s32"); a(f"s_add_u32 s31, s31, {LB+SSQ}"); a(f"s_add_u32 s32, s32, {LB+DMU}")
    a(f"buffer_store_dword v{SQ}, v6, {WS}, s31 offen sc1")
    a(f"buffer_store_dword v{SQ+2}, v7, {WS}, s32 offen sc1")
    end(a)
    return a

def big(i):
    return ar(4 * i) if i < 64 else vr(224 + 4 * (i - 64))
GC1 = -2 * LOG2E * 0.7978845608028654
GC3 = GC1 * 0.044715
C1, C3, CV = 16, 20, 24
FACC = [28, 60, 92]; FT = 124; FH = 140; FWB = 148; FNB = 12

def ffn_ids(a):
    xcd_split(a, 16, 17)
    a("s_and_b32 s18, s16, 3")
    a("s_lshr_b32 s16, s16, 2"); a("s_lshl_b32 s16, s16, 2"); a("s_lshr_b32 s19, s17, 3"); a("s_add_u32 s16, s16, s19")
    a("s_and_b32 s17, s17, 7")
    a("s_mul_i32 s25, s3, 9216")

def dma_chunk(slot, tag, sreg=24):
    o = []
    for j in range(9):
        if j % 4 == 0: o.append(f"s_add_u32 m0, s25, {slot*CH + j*1024}")
        o.append((f"buffer_load_dwordx4 v4, {WS}, s{sreg} offen offset:{(j%4)*1024} lds", tag))
        if j % 4 == 3: o.append(f"s_add_u32 s{sreg}, s{sreg}, 4096")
    o.append(f"s_add_u32 s{sreg}, s{sreg}, {CH - 8192}")
    return o

def gelu_ops(o):
    f = []
    for t in range(4):
        g = [o + 4 * t + i for i in range(4)]; u = [o + 16 + 4 * t + i for i in range(4)]
        x = [FT + 8 * (t & 1) + i for i in range(4)]; m = [FT + 8 * (t & 1) + 4 + i for i in range(4)]
        for i in range(4): f.append(f"v_mul_f32 v{x[i]}, v{g[i]}, v{g[i]}")
        for i in range(4): f.append(f"v_fma_f32 v{x[i]}, v{x[i]}, v{C3+t}, v{C1+t}")
        for i in range(4): f.append(f"v_mul_f32 v{x[i]}, v{x[i]}, v{g[i]}")
        for i in range(4):
            f.append(f"v_exp_f32 v{x[i]}, v{x[i]}"); f.append(f"v_mul_f32 v{m[i]}, v{g[i]}, v{u[i]}")
        for i in range(4): f.append(f"v_fma_f32 v{x[i]}, v{x[i]}, v{CV+t}, v{CV+t}")
        for i in range(4): f.append(f"v_rcp_f32 v{x[i]}, v{x[i]}")
        for i in range(4): f.append(f"v_mul_f32 v{m[i]}, v{m[i]}, v{x[i]}")
        f.append(f"v_cvt_pk_bf16_f32 v{FH+2*t}, v{m[0]}, v{m[1]}"); f.append(f"v_cvt_pk_bf16_f32 v{FH+2*t+1}, v{m[2]}, v{m[3]}")
        if t & 1:
            h = FH + 2 * (t - 1)
            tail = [f"v_permlane16_swap_b32 v{h}, v{h+2}", f"v_permlane16_swap_b32 v{h+1}, v{h+3}",
                    (f"buffer_store_dwordx4 {vr(h)}, v9, {WS}, s{26 + (t>>1)} offen sc1", "h"), f"s_add_u32 s{26+(t>>1)}, s{26+(t>>1)}, 4096"]
            if t == 1: pend = tail
            else: f += tail
        if t == 2:
            k = len(f) - 30
            f[k:k] = pend
    return f

def g1(l):
    a = Prog(); begin(a, 256)
    LB = LB0 + l * LBS
    ffn_ids(a)
    a("s_lshl_b32 s19, s18, 3"); a("s_add_u32 s19, s19, s17"); a(f"s_mul_i32 s24, s19, {9*CH}"); a("s_add_u32 s24, s24, s25"); a(f"s_add_u32 s24, s24, {WGU}")
    a.ext(dma_chunk(0, "w0")); a.ext(dma_chunk(1, "w1"))
    a("s_lshl_b32 s19, s16, 2"); a("s_add_u32 s19, s19, s3")
    a(f"s_mul_i32 s20, s19, {4*72*256}"); a(f"s_add_u32 s20, s20, {LB+Y1}")
    for t in range(1, 4): a(f"s_add_u32 s{20+t}, s20, {t*72*256}")
    xl = []
    for ks in range(18):
        for t in range(4): xl.append(f"buffer_load_dwordx4 {big(ks*4+t)}, v4, {WS}, s{20+t} offen offset:{(ks&3)*1024}")
        if ks & 3 == 3: xl += [f"s_add_u32 s{20+t}, s{20+t}, 4096" for t in range(4)]
    n0 = 8 * 4 + 2 * 4 + 8
    a.ext(xl[:n0]); xl = xl[n0:]
    for s in range(4): a(f"v_add_u32 v{5+s}, {s*CH}, v4")
    a("v_and_b32 v2, 15, v1"); a("v_lshrrev_b32 v3, 4, v1")
    a("v_and_b32 v9, 1, v3"); a("v_mul_u32_u24 v9, 147456, v9"); a("v_lshrrev_b32 v10, 1, v3"); a("v_lshl_add_u32 v9, v10, 8, v9"); a("v_lshl_add_u32 v9, v2, 4, v9")
    a(f"s_mul_i32 s26, s19, {4*147456}"); a(f"s_mul_i32 s27, s18, {CH}"); a("s_add_u32 s26, s26, s27"); a("s_lshl_b32 s27, s17, 9"); a("s_add_u32 s26, s26, s27")
    a(f"s_add_u32 s26, s26, {LB+HH}"); a(f"s_add_u32 s27, s26, {2*147456}")
    SQ = 196
    a("v_lshlrev_b32 v10, 15, v3"); a("v_lshl_add_u32 v10, v2, 2, v10")
    a("s_lshl_b32 s28, s19, 8"); a(f"s_add_u32 s28, s28, {LB+SSQ}")
    sq = []
    for i in range(4):
        for t in range(4): sq.append(f"buffer_load_dword v{SQ+4*t+i}, v10, {WS}, s28 offen offset:{64*t}")
        sq.append("s_add_u32 s28, s28, 8192")
    st = []
    for t in range(4): st += [f"v_add_f32 v{SQ+4*t}, v{SQ+4*t}, v{SQ+4*t+1}", f"v_add_f32 v{SQ+4*t+2}, v{SQ+4*t+2}, v{SQ+4*t+3}"]
    for t in range(4): st.append(f"v_add_f32 v{SQ+4*t}, v{SQ+4*t}, v{SQ+4*t+2}")
    for sw in ("16", "32"):
        for t in range(4): st.append(f"v_mov_b32 v{SQ+4*t+1}, v{SQ+4*t}")
        for t in range(4): st.append(f"v_permlane{sw}_swap_b32 v{SQ+4*t}, v{SQ+4*t+1}")
        for t in range(4): st.append(f"v_add_f32 v{SQ+4*t}, v{SQ+4*t}, v{SQ+4*t+1}")
    st.append(f"v_mov_b32 v{SQ+1}, {hx(f2u(1e-5))}")
    for t in range(4): st.append(f"v_fmamk_f32 v{CV+t}, v{SQ+4*t}, {hx(f2u(1/576))}, v{SQ+1}")
    for t in range(4): st.append(f"v_rsq_f32 v{SQ+4*t}, v{CV+t}")
    for t in range(4): st.append(f"v_rcp_f32 v{SQ+4*t+2}, v{CV+t}")
    for t in range(4): st.append(f"v_mul_f32 v{C1+t}, {hx(f2u(GC1))}, v{SQ+4*t}")
    for t in range(4): st.append(f"v_mul_f32 v{SQ+4*t}, {hx(f2u(GC3))}, v{SQ+4*t}")
    for t in range(4): st.append(f"v_mul_f32 v{C3+t}, v{SQ+4*t}, v{SQ+4*t+2}")
    seq = []
    for kp in range(9):
        for c in range(2):
            for f in range(2): seq.append((c, kp, f))
    for c in range(2, 9):
        for kp in range(9):
            for f in range(2): seq.append((c, kp, f))
    frs = [(c, kp * 4 + f * 2 + kk) for (c, kp, f) in seq for kk in range(2)]
    wb = lambda i: vr(FWB + 4 * (i % FNB))
    def rd(i):
        c, fi = frs[i]; o = []
        if c >= 2 and fi == 0:
            if c == 2: o.append(f"NEED {wb(i-5)}")
            o += [f"WAITTAG w{c}", "s_barrier"]
        o.append(f"ds_read_b128 {wb(i)}, v{5 + c % 4} offset:{fi*1024}")
        return o
    RD = 6
    a("WAITTAG w0,w1"); a("s_barrier")
    for i in range(RD): a.ext(rd(i))
    slots = []; start = {}
    for gi, (c, kp, f) in enumerate(seq):
        if kp == 0 and f == 0: start[c] = len(slots)
        for t in range(4):
            for kk in range(2):
                ks = 2 * kp + kk; d = vr(FACC[c % 3] + 16 * f + 4 * t)
                pre = [f"NEED {wb(2*gi)}, {wb(2*gi+1)}"] if (t == 0 and kk == 0) else []
                post = []
                if kk == 1 and t in (0, 2) and 2 * gi + RD + t // 2 < len(frs): post = rd(2 * gi + RD + t // 2)
                slots.append([pre, mf(d, wb(2 * gi + kk), big(ks * 4 + t), d if ks else "0"), post])
    start[9] = len(slots)
    def spread(ops, s0, s1):
        pos = [i for i in range(s0, s1) if i % 4 == 3]
        for j, o in enumerate(ops): slots[pos[j * len(pos) // len(ops)]][2].append(o)
    spread(xl, 0, 150)
    spread(sq + dma_chunk(2, "w2") + dma_chunk(3, "w3"), 150, 250)
    place(slots, st, 2, start=256, end=start[2])
    for c in range(2, 9):
        if c + 2 < 9: spread(dma_chunk((c + 2) % 4, f"w{c+2}"), start[c] + 4, start[c] + 110)
        left = place(slots, gelu_ops(FACC[(c - 2) % 3]), 2, start=start[c] + 2, end=start[c + 1])
        if left: print("gelu left", c, left)
    a.ext(flat(slots))
    a.ext(gelu_ops(FACC[7 % 3])); a.ext(gelu_ops(FACC[8 % 3]))
    end(a)
    return a

def g2(l):
    a = Prog(); begin(a, 256)
    LB = LB0 + l * LBS
    ffn_ids(a)
    a("s_and_b32 s19, s17, 3")
    a("s_lshl_b32 s20, s18, 2"); a("s_add_u32 s20, s20, s19"); a(f"s_mul_i32 s24, s20, {9*CH}"); a("s_add_u32 s24, s24, s25"); a(f"s_add_u32 s24, s24, {WD}")
    a("s_lshl_b32 s26, s16, 3"); a("s_and_b32 s27, s17, 4"); a("s_add_u32 s26, s26, s27"); a("s_add_u32 s26, s26, s3")
    a(f"s_mul_i32 s20, s26, {2*147456}"); a(f"s_mul_i32 s21, s18, {CH}"); a("s_add_u32 s20, s20, s21"); a(f"s_add_u32 s20, s20, {LB+HH}"); a("s_add_u32 s21, s20, 147456")
    def hl(c):
        o = []
        for pp in range(4):
            for t in range(2): o.append(f"buffer_load_dwordx4 {big((c*4+pp)*2+t)}, v4, {WS}, s{20+t} offen offset:{pp*1024}")
        return o + ["s_add_u32 s20, s20, 4096", "s_add_u32 s21, s21, 4096"]
    for c in range(3):
        a.ext(dma_chunk(c, f"w{c}")); a.ext(hl(c))
    a("v_and_b32 v2, 15, v1"); a("v_lshrrev_b32 v3, 4, v1")
    a("v_and_b32 v13, 3, v2"); a("v_add_u32 v14, v13, v3"); a("v_lshrrev_b32 v15, 2, v2"); a("v_lshl_add_u32 v14, v14, 2, v15"); a("v_and_b32 v14, 15, v14")
    a("v_lshl_add_u32 v14, v13, 4, v14"); a("v_lshlrev_b32 v5, 4, v14")
    a("v_lshrrev_b32 v13, 3, v2"); a("v_lshl_add_u32 v13, v3, 1, v13"); a("v_and_b32 v14, 2, v2"); a("v_lshl_add_u32 v13, v14, 1, v13"); a("v_and_b32 v13, 7, v13")
    a("v_and_b32 v14, 7, v2"); a("v_lshl_add_u32 v13, v14, 3, v13"); a("v_lshlrev_b32 v9, 4, v13")
    for s in range(1, 4): a(f"v_add_u32 v{5+s}, {s*CH}, v5"); a(f"v_add_u32 v{9+s}, {s*CH}, v9")
    AC = 16
    acc = lambda nt, t: AC + 36 * t + 4 * nt
    seq = [(c, k2, nt) for c in range(9) for k2 in range(2) for nt in range(9)]
    frs = [(c, k2 * 18 + nt * 2 + kk, nt) for (c, k2, nt) in seq for kk in range(2)]
    wb = lambda i: vr(FWB + 4 * (i % FNB))
    def rd(i):
        c, fi, nt = frs[i]; o = []
        if fi == 0: o += [f"WAITTAG w{c}", "s_barrier"]
        o.append(f"ds_read_b128 {wb(i)}, v{(9 if nt == 8 else 5) + c % 4} offset:{fi*1024}")
        return o
    RD = 8
    for i in range(RD): a.ext(rd(i))
    slots = []
    for gi, (c, k2, nt) in enumerate(seq):
        for t in range(2):
            for kk in range(2):
                ks = c * 4 + k2 * 2 + kk; d = vr(acc(nt, t))
                pre = [f"NEED {wb(2*gi)}, {wb(2*gi+1)}"] if (t == 0 and kk == 0) else []
                post = []
                if kk == 0 and 2 * gi + RD + t < len(frs): post = rd(2 * gi + RD + t)
                slots.append([pre, mf(d, wb(2 * gi + kk), big(ks * 2 + t), d if ks else "0"), post])
    for c in range(9):
        ops = []
        if c == 0: ops += dma_chunk(3, "w3")
        elif 4 <= c + 2 < 9: ops += dma_chunk((c + 2) % 4, f"w{c+2}")
        if c + 3 < 9: ops += hl(c + 3)
        pos = [i for i in range(72 * c, 72 * c + 56) if i % 2 == 1]
        for j, o in enumerate(ops): slots[pos[j * len(pos) // len(ops)]][2].append(o)
    a.ext(flat(slots))
    a(f"s_mul_i32 s28, s26, {2*72*256}"); a(f"s_mul_i32 s29, s19, {18*256}"); a("s_add_u32 s28, s28, s29"); a(f"s_mul_i32 s29, s18, {ACT}"); a("s_add_u32 s28, s28, s29")
    a(f"s_add_u32 s28, s28, {LB+PP}"); a(f"s_add_u32 s29, s28, {72*256}"); a("s_add_u32 s30, s28, 4096")
    a("v_and_b32 v13, 1, v3"); a(f"v_mul_u32_u24 v13, {72*256}, v13"); a("v_lshrrev_b32 v14, 1, v3"); a("v_lshl_add_u32 v13, v14, 8, v13"); a("v_lshl_add_u32 v13, v2, 4, v13")
    O = 96
    for P in range(4):
        for t in range(2):
            o = O + 8 * P + 4 * t
            for m in range(4): a(f"v_cvt_pk_bf16_f32 v{o+m}, v{acc(2*P,t)+2*m}, v{acc(2*P,t)+2*m+1}")
            a(f"buffer_store_dwordx4 {vr(o)}, v4, {WS}, s{28+t} offen offset:{P*1024} sc1")
    o = O + 32
    for t in range(2):
        for m in range(2): a(f"v_cvt_pk_bf16_f32 v{o+2*t+m}, v{acc(8,t)+2*m}, v{acc(8,t)+2*m+1}")
    a(f"v_permlane16_swap_b32 v{o}, v{o+2}"); a(f"v_permlane16_swap_b32 v{o+1}, v{o+3}")
    a(f"buffer_store_dwordx4 {vr(o)}, v13, {WS}, s30 offen sc1")
    end(a)
    return a

def kd(l):
    a = Prog(); begin(a, 256)
    LB = LB0 + l * LBS
    if l == 1: a("s_load_dwordx2 s[6:7], s[0:1], 56")
    a("s_and_b32 s17, s2, 7"); a("s_lshl_b32 s17, s17, 5"); a("s_lshr_b32 s18, s2, 3"); a("s_add_u32 s17, s17, s18")
    tokgroup_addr(a, 17)
    L = 16; T = 80
    a("v_add_u32 v8, 4096, v5")
    srcs = [LB + Y1] + [LB + PP + i * ACT for i in range(4)]
    for s in range(5): a(f"s_mov_b32 s{24+s}, {srcs[s]}")
    for s in range(5):
        for i in range(3): a(f"buffer_load_dwordx4 {vr(L+12*s+4*i)}, {'v8' if i == 2 else 'v5'}, {WS}, s{24+s} offen offset:{2048*(i&1)}")
    a(f"s_mov_b32 s29, {LB+ST}"); a(f"s_mov_b32 s30, {LB+DMU}"); a("v_lshrrev_b32 v9, 1, v7")
    a(f"buffer_load_dword v10, v7, {WS}, s29 offen"); a(f"buffer_load_dword v11, v9, {WS}, s30 offen")
    unpack(a, T, L, 12)
    for s in range(1, 5):
        for i in range(12):
            a(f"v_lshlrev_b32 v12, 16, v{L+12*s+i}"); a(f"v_and_b32 v13, 0xffff0000, v{L+12*s+i}")
            a(f"v_add_f32 v{T+2*i}, v{T+2*i}, v12"); a(f"v_add_f32 v{T+2*i+1}, v{T+2*i+1}, v13")
    a("v_add_f32 v10, v10, v11")
    if l == 0:
        ln_stats(a, T, 104, 0)
        a(f"s_mov_b32 s22, {LB+LBS+XN}"); a(f"s_mov_b32 s23, {LB+LBS+ST}")
        ln_write(a, T, 104, L, 5, 22, 10, 6, 23)
    else:
        srd(a, 12, 6, 2048 * 576 * 2)
        a("v_and_b32 v2, 7, v1"); a("v_lshrrev_b32 v3, 3, v1")
        a("v_mul_u32_u24 v8, 1152, v3"); a("v_lshl_add_u32 v8, v2, 4, v8")
        a(f"s_mul_i32 s18, s17, {8*1152}"); a("s_mul_i32 s19, s3, 384"); a("s_add_u32 s18, s18, s19")
        a("s_cmp_eq_u32 s3, 3"); a(f"s_cselect_b32 s18, {hx(OOB)}, s18"); a("v_add_u32 v8, s18, v8")
        a("v_lshlrev_b32 v9, 5, v2"); a("v_lshl_add_u32 v9, v3, 2, v9")
        for i in range(24): a(f"v_add_f32 v{T+i}, v{T+i}, v10")
        for i in range(12):
            a(f"v_cvt_pk_bf16_f32 v{L+i}, v{T+2*i}, v{T+2*i+1}"); a(f"ds_bpermute_b32 v{L+12+i}, v9, v{L+i}")
        for i in range(3): a(f"buffer_store_dwordx4 {vr(L+12+4*i)}, v8, s[12:15], 0 offen offset:{128*i} sc1")
    end(a)
    return a

HEADER = open("interleave_layers__linear_attn_block__glu_gated_geglu__prompt.s.ref").read().split("; Override")[0] if __name__ == "__main__" else ""
def build_multi():
    a0, tot = k0()
    ks = [("k0_kernel", a0.finalize(True), 96, 96, 102)]
    ls = [("k0_kernel", tot, 256, 1024)]
    for l in range(2):
        for n, fn, vg, ac, lds in (("ka", ka, 512, 256, 163840), ("kb", kb, 512, 256, 40960), ("g1", g1, 512, 256, 163840), ("g2", g2, 512, 256, 163840), ("kd", kd, 128, 128, 1024)):
            ks.append((f"{n}{l}_kernel", fn(l).finalize(True), vg, ac, 102)); ls.append((f"{n}{l}_kernel", 256, 256, lds))
    return make_file(ls, ks), [x[1] for x in ls]
if __name__ == "__main__":
    STAMP = False
    t, _ = build_multi()
    open("multi.s", "w").write(HEADER + t)
    STAMP = True
    t, _ = build_multi()
    open("multi_st.s", "w").write(t)
```

```python
WQ = 0x0000000; WQ_P = 129024
WO = 0x0200000
WGU = 0x0300000
WD = 0x0E00000
LB0 = 0x1400000; LBS = 0x2400000
XN = 0; Y1 = 0x240000; PQM = 0x480000; PQL = 0x680000; KV = 0x700000; ST = 0x710000
SSQ = 0x718000; DMU = 0x738000; PP = 0x740000; HH = 0x1100000
KV_P = 2816
ACT = 0x240000
CH = 36864
WS_SIZE = 0x0F000000
OOB = 0x7FFF0000
def dperm(r): return 2 * (r & 7) + (r >> 3)
def wq_base(F, p): return [576, 1152, 0][F >> 1] + 18 * (F & 1) + 36 * p
def wq_col(p, F, r):
    if F < 6: return wq_base(F, p) + dperm(r)
    c = r & 7
    return wq_base(c, p) + 16 + (r >> 3) if c < 6 else None
def wq_frag(F, ks):
    kp, kk = ks >> 1, ks & 1
    if F in (4, 5): return 90 + kp * 4 + (F - 4) * 2 + kk
    return kp * 10 + (4 if F == 6 else F) * 2 + kk
def fcol(tau, r): return 64 * (tau >> 2) + 8 * (r & 7) + 2 * (tau & 3) + (r >> 3)
def ncol(nq, nt, r): return 128 * nq + 32 * (nt >> 1) + 8 * (r >> 2) + 4 * (nt & 1) + (r & 3) if nt < 8 else 512 + 16 * nq + r
def wd_pos(nt, r, q):
    if nt < 8:
        c, j = r >> 2, r & 3
        return 16 * j + ((4 * q + 4 * j + c) & 15)
    a, i = r >> 3, r & 7
    return 8 * i + ((2 * q + a + 4 * ((i >> 1) & 1)) & 7)
def wo_krow(ks, q, e):
    if ks < 16: return 18 * (2 * ks + (e >> 2)) + dperm(4 * q + (e & 3))
    return 18 * (4 * (4 * (ks - 16) + (e >> 1)) + q) + 16 + (e & 1)

WBAR = WO + 36 * 18 * 1024
EPOCH = 0x5F00000
def tau_of(fs, c): return 32 * c + fs
```

```python
import re
REG = re.compile(r"\b([vas])\[(\d+):(\d+)\]|\b([vas])(\d+)\b|\b(vcc|exec|m0|scc)\b")
TRANS = ("v_exp_f32", "v_log_f32", "v_rcp_f32", "v_rsq_f32", "v_sqrt_f32", "v_sin_f32", "v_cos_f32", "v_rcp_iflag_f32")

def regs_of(txt):
    out = []
    for m in REG.finditer(txt):
        if m.group(1): out += [m.group(1) + str(i) for i in range(int(m.group(2)), int(m.group(3)) + 1)]
        elif m.group(4): out.append(m.group(4) + m.group(5))
        else: out.append(m.group(6))
    return out

def split_ops(s):
    parts = s.split(None, 1)
    if len(parts) == 1: return parts[0], []
    return parts[0], [x.strip() for x in parts[1].split(",")]

class Ins:
    __slots__ = ("txt", "op", "dst", "src", "kind", "tag", "srcC", "srcAB", "data")
    def __init__(self, txt, tag=None):
        self.txt = txt; self.tag = tag
        self.srcC = set(); self.srcAB = set(); self.data = set()
        s = txt.split(";")[0].strip()
        if not s or s.endswith(":") or s.startswith("."):
            self.op = ""; self.dst = set(); self.src = set(); self.kind = "label" if s.endswith(":") else "dir"; return
        op, ops = split_ops(s)
        self.op = op
        R = [regs_of(o) for o in ops]
        allr = [r for x in R for r in x]
        dst, src = set(), set()
        if op in ("NEED", "WAITTAG", "WAITALL"):
            self.kind = "pseudo"; src = set(allr)
        elif op.startswith("v_mfma"):
            self.kind = "mfma"; dst = set(R[0]); src = set(R[1] + R[2] + R[3]); self.srcC = set(R[3]); self.srcAB = set(R[1] + R[2])
        elif op.startswith(("buffer_", "global_")):
            self.kind = "vmem"
            if op in ("buffer_wbl2", "buffer_inv"): pass
            elif "_load" in op and (re.search(r"\blds\b", s) or "_lds_" in op): src = set(allr) | {"m0"}; self.kind = "dma"
            elif "_load" in op:
                dst = set(R[0]); src = set(r for x in R[1:] for r in x)
                if tag == "touch": dst = set()
            elif "atomic" in op and re.search(r"\bsc0\b", s):
                dst = set(R[0]); src = set(allr)
            else:
                src = set(allr)
                if op.endswith(("dwordx3", "dwordx4")): self.data = set(R[0] if op.startswith("buffer") else R[1])
        elif op.startswith("ds_"):
            self.kind = "ds"
            if op.startswith(("ds_read", "ds_bpermute", "ds_permute", "ds_swizzle")) or "_rtn" in op:
                dst = set(R[0]); src = set(r for x in R[1:] for r in x)
                if "_d16" in op: src |= dst
            else: src = set(allr)
        elif op.startswith(("s_load", "s_buffer_load", "s_memtime", "s_memrealtime")):
            self.kind = "smem"; dst = set(R[0]); src = set(r for x in R[1:] for r in x)
        elif op.startswith("s_"):
            self.kind = "salu"
            if op.startswith(("s_cmp", "s_bitcmp")): src = set(allr); dst = {"scc"}
            elif op.startswith(("s_cbranch", "s_branch", "s_waitcnt", "s_nop", "s_barrier", "s_endpgm", "s_setprio", "s_sleep")):
                if "vcc" in op: src = {"vcc"}
                if "exec" in op: src = {"exec"}
            else:
                dst = set(R[0]); src = set(r for x in R[1:] for r in x)
                if "saveexec" in op: dst |= {"exec"}; src |= {"exec"}
        elif op.startswith("v_"):
            self.kind = "valu"
            if "permlane" in op and "swap" in op: dst = set(allr); src = set(allr)
            else:
                dst = set(R[0]); src = set(r for x in R[1:] for r in x)
                if op.startswith(("v_add_co", "v_sub_co", "v_addc_co", "v_subb_co", "v_subrev_co")): dst |= set(R[1])
                if op.startswith(("v_fmac", "v_dot2c", "v_pk_fmac", "v_writelane")) or "_dpp" in op or "row_" in s or "quad_perm" in s or "_sdwa" in op: src |= set(R[0])
                if op.startswith("v_cmpx"): dst |= {"exec"}
        else:
            raise ValueError("unknown op: " + txt)
        self.dst, self.src = dst, src
    def is_dpp(self): return "_dpp" in self.op or "row_" in self.txt or "quad_perm" in self.txt
    def passes(self):
        return 8 if "32x32" in self.op else 4

def need_states(p, c):
    n = 0
    pv = p.kind == "valu"; cv = c.kind == "valu"
    pd = p.dst
    if pv:
        vd = {r for r in pd if r[0] in "va" and r != "vcc"}
        sd = {r for r in pd if r[0] == "s" or r == "vcc"}
        if c.kind == "mfma" and vd & c.src: n = max(n, 2)
        if cv and c.is_dpp() and vd & c.src: n = max(n, 2)
        if cv and "permlane" in c.op and vd & c.src: n = max(n, 2)
        if cv and c.op.startswith(("v_readlane", "v_readfirstlane")) and vd & c.src: n = max(n, 1)
        if p.op.startswith(TRANS) and cv and vd & c.src: n = max(n, 1)
        if ("_sdwa" in p.op or "op_sel" in p.txt) and cv and vd & (c.src | c.dst): n = max(n, 1)
        if p.op.startswith("v_dot") and c.op != p.op and vd & (c.src | c.dst): n = max(n, 3)
        if sd:
            if c.kind in ("vmem", "dma") and sd & c.src: n = max(n, 5)
            if cv and sd & c.src: n = max(n, 4 if c.op.startswith(("v_readlane", "v_writelane")) else 2)
            if c.kind == "salu" and sd & c.src: n = max(n, 2)
        if "exec" in pd:
            if cv and c.is_dpp(): n = max(n, 5)
            if c.kind == "mfma": n = max(n, 4)
            if cv and (c.op.startswith(("v_readlane", "v_readfirstlane", "v_writelane")) or "permlane" in c.op): n = max(n, 4)
    if p.kind == "salu" and "m0" in pd and c.kind == "dma": n = max(n, 1)
    if p.kind == "vmem" and p.data and (p.data & c.dst): n = max(n, 2)
    if p.kind == "mfma":
        ps = p.passes()
        if c.kind == "mfma":
            if pd & c.srcAB: n = max(n, ps + 4)
            if pd & c.srcC and not (pd == c.srcC and c.op == p.op): n = max(n, ps + 2)
            if pd & c.dst and not (pd == c.dst and c.op == p.op): n = max(n, ps + 2)
        elif c.kind in ("valu", "vmem", "dma", "ds"):
            if pd & (c.src | c.dst): n = max(n, ps + 4)
            if cv and p.srcC & c.dst: n = max(n, ps - 1)
    return n

class Prog:
    def __init__(self):
        self.ins = []
    def __call__(self, txt, tag=None):
        if isinstance(txt, tuple): txt, tag = txt
        for l in txt.split("\n"):
            self.ins.append(Ins(l, tag))
    def ext(self, lst):
        for l in lst: self(l)
    def finalize(self, verbose=False):
        out = []
        vm = []; lg = []
        nwait = 0; seen_tags = set()
        for i in self.ins:
            if i.kind in ("label", "dir"):
                out.append(i); continue
            if i.op == "s_waitcnt":
                m = re.search(r"vmcnt\((\d+)\)", i.txt)
                if m: vm = vm[len(vm) - int(m.group(1)):] if int(m.group(1)) < len(vm) else vm
                m = re.search(r"lgkmcnt\((\d+)\)", i.txt)
                if m: lg = lg[len(lg) - int(m.group(1)):] if int(m.group(1)) < len(lg) else lg
                out.append(i); continue
            touch = i.src | i.dst
            nv = nl = None
            tags = None
            if i.op == "WAITTAG":
                tags = set(i.txt.split()[1].split(",")); touch = set()
                assert tags <= seen_tags, ("WAITTAG before any op with that tag", tags)
            if i.tag: seen_tags.add(i.tag)
            for k in range(len(vm) - 1, -1, -1):
                if (vm[k].dst & touch) or (tags and vm[k].tag in tags) or i.op == "WAITALL":
                    nv = len(vm) - 1 - k; break
            for k in range(len(lg) - 1, -1, -1):
                if (lg[k].dst & touch) or (tags and lg[k].tag in tags) or i.op == "WAITALL":
                    nl = len(lg) - 1 - k; break
            if nl is not None and any(x.kind == "smem" for x in lg): nl = 0
            if nv is not None or nl is not None:
                w = "s_waitcnt"
                if nv is not None:
                    nv = min(nv, 63); w += f" vmcnt({nv})"; vm = vm[len(vm) - nv:] if nv else []
                if nl is not None:
                    nl = min(nl, 15); w += f" lgkmcnt({nl})"; lg = lg[len(lg) - nl:] if nl else []
                out.append(Ins(w)); nwait += 1
            if i.kind == "pseudo": continue
            out.append(i)
            if i.tag == "phantom": pass
            elif i.kind in ("vmem", "dma"): vm.append(i)
            elif i.kind in ("ds", "smem"): lg.append(i)
        res = []; nnop = 0
        for i in out:
            if i.kind in ("label", "dir"):
                res.append(i); continue
            dist = 0; pad = 0
            for p in reversed(res):
                if p.kind in ("label", "dir"): continue
                if dist >= 20: break
                n = need_states(p, i)
                if n > dist: pad = max(pad, n - dist)
                dist += (int(p.txt.split()[1]) + 1) if p.op == "s_nop" else 1
            if pad:
                res.append(Ins(f"s_nop {pad-1}")); nnop += 1
            res.append(i)
        if verbose: print(f"  instrs {len(res)} waits {nwait} nops {nnop}")
        return "\n".join(x.txt for x in res) + "\n"

COST = dict(vmem=1, ds=1, bar=1)
def cost(s):
    if isinstance(s, tuple): s = s[0]
    if s.startswith(TRANS): return 2
    if s.endswith(":"): return 0
    if s.startswith("v_mfma"): return 4
    if s.startswith("buffer_"): return COST["vmem"]
    if s.startswith("ds_read"): return COST["ds"]
    if s.startswith("s_barrier"): return COST["bar"]
    return 1 + s.count("\n")

def place(slots, fillers, cap, start=0, end=None):
    n = len(slots); end = n if end is None else end
    fixed = [sum(cost(x) for x in slots[i][2]) + (sum(cost(x) for x in slots[i+1][0]) if i + 1 < n else 0) for i in range(n)]
    total = sum(cost(f) for f in fillers)
    avail = max(1, sum(max(0, cap - fixed[i]) for i in range(start, end)))
    k = 0; used = 0; placed = 0
    for i in range(start, end):
        room = max(0, cap - fixed[i]); used += room
        tgt = total * used / avail
        while k < len(fillers) and cost(fillers[k]) <= room and placed < tgt + 1:
            room -= cost(fillers[k]); placed += cost(fillers[k]); slots[i][2].append(fillers[k]); k += 1
    left = len(fillers) - k
    slots[end - 1][2].extend(fillers[k:])
    return left

def flat(slots):
    out = []
    for pre, m, post in slots: out += list(pre) + [m] + list(post)
    return out

def _rw(s):
    tag = None
    if isinstance(s, tuple): s, tag = s
    r, w = set(), set(); mem = False
    for l in s.split("\n"):
        i = Ins(l, tag); r |= i.src; w |= i.dst
        if i.kind in ("vmem", "dma", "ds", "pseudo", "label") or i.op in ("s_barrier",) or i.op.startswith("s_cbranch"): mem = True
        if i.kind == "salu" and not i.op.startswith(("s_mov", "s_cselect", "s_nop", "s_waitcnt")): w.add("scc")
        if i.op.startswith("s_cselect"): r.add("scc")
    w.discard("scc") if "\n" in s else None
    w.discard("scc"); r.discard("scc")
    return r, w, mem

def _tx(x): return x[0] if isinstance(x, tuple) else x
def cls(x):
    t = _tx(x)
    if t.endswith(":"): return "L"
    if t.startswith(("NEED", "WAITTAG", "WAITALL", "s_waitcnt")): return "W"
    if t.startswith(("buffer_", "global_")): return "M"
    if t.startswith("ds_"): return "D"
    if t.startswith("s_"): return "S"
    return "V"
def gapcost(ops):
    c = 0; seenv = False; first = True
    hasm = any(cls(o) == "M" for o in ops)
    for o in ops:
        k = cls(o); t = _tx(o)
        if k == "L": continue
        if k in "WS":
            n = 1 + t.count("\n")
            if t.startswith("s_barrier"): n = 3
            if first and not (k == "S" and hasm): n -= 1
            c += n
        elif k == "M": c += (4 if "store" in t else 2) + (2 if seenv else 0)
        elif k == "D": c += 1 + (2 if seenv else 0)
        else:
            seenv = True
            c += 4 if t.startswith("v_mfma") else (2 if t.startswith(TRANS) or "permlane" in t else 1)
        first = False
    return c
def hoist_pre(slots):
    for i in range(1, len(slots)):
        if slots[i][0]:
            slots[i-1][2][:0] = slots[i][0]; slots[i][0] = []
def _insert(gap, rws, x, rwx):
    k = cls(x); pos = len(gap)
    if k == "V": return pos
    rank = {"W": 0, "S": 0, "M": 1, "D": 1, "V": 2, "L": -1}
    while pos > 0:
        y = gap[pos - 1]; ry = rws(y)
        if rank[cls(y)] <= rank[k] or (ry[1] & (rwx[0] | rwx[1])) or (ry[0] & rwx[1]) or (ry[2] and rwx[2]): break
        pos -= 1
    return pos
def normalize(slots):
    for s in slots:
        g = []
        for x in s[2]: g.insert(_insert(g, _rw, x, _rw(x)), x)
        s[2][:] = g

def pack(slots, fillers, start=0, end=None, cap=2, window=20, front=False):
    n = len(slots); end = n if end is None else end
    rw = [_rw(f) for f in fillers]; cs = [gapcost([f]) for f in fillers]
    N = len(fillers)
    deps = [[] for _ in range(N)]
    for j in range(N):
        for i in range(max(0, j - 80), j):
            raw = rw[i][1] & rw[j][0]
            if raw or (rw[i][0] & rw[j][1]) or (rw[i][1] & rw[j][1]) or (rw[i][2] and rw[j][2]): deps[j].append((i, bool(raw)))
    gap = lambda g: slots[g][2] + (slots[g+1][0] if g + 1 < n else [])
    total = sum(min(c, 2) for c in cs); rooms = [max(0, cap - gapcost(gap(i))) for i in range(n)]
    avail = max(1, sum(rooms[start:end]))
    over = max(0, total - avail)
    done = [None] * N; placed = 0; used = 0; first = 0; extra_given = 0
    for g in range(start, end):
        used += rooms[g]
        lim = max(cap, gapcost(gap(g)))
        behind = (total - placed) - rooms[g] - (avail - used)
        gaps_left = end - g
        if behind > 0 and (behind >= gaps_left or extra_given < (g - start + 1) * (over + 0.0) / (end - start) or behind > over - extra_given):
            k = max(1, behind // gaps_left); lim += k; extra_given += k
        tgt = total if (front or total >= avail * 0.9) else total * used / avail + 1
        while placed < tgt:
            cand = None; cnt = 0; j = first
            cur = gapcost(gap(g))
            while j < N and cnt < window:
                if done[j] is None:
                    cnt += 1
                    ok = all(done[i] is not None and (not raw or done[i] < g or not needs_gap(fillers[i], fillers[j])) for i, raw in deps[j])
                    if ok:
                        p = _insert(slots[g][2], _rw, fillers[j], rw[j])
                        trial = slots[g][2][:p] + [fillers[j]] + slots[g][2][p:] + (slots[g+1][0] if g + 1 < n else [])
                        nc = gapcost(trial)
                        if nc <= lim or (cs[j] > cap and cur == 0 and nc == cs[j]):
                            if cand is None: cand = (j, p)
                            if (nc - cur >= 2 or nc == cur) and cnt <= window // 2: cand = (j, p); break
                j += 1
            if cand is None: break
            j, p = cand
            done[j] = g; slots[g][2].insert(p, fillers[j]); placed += min(cs[j], 2)
            while first < N and done[first] is not None: first += 1
    left = [fillers[j] for j in range(N) if done[j] is None]
    slots[end - 1][2].extend(left)
    return len(left)

def needs_gap(p, c):
    p = Ins((p[0] if isinstance(p, tuple) else p).split("\n")[-1]); c = Ins((c[0] if isinstance(c, tuple) else c).split("\n")[0])
    return need_states(p, c) > 0 or p.kind in ("ds", "vmem")

def est_cycles(slots, s0, s1):
    n = len(slots)
    return sum(max(16, 8 + 4 * gapcost(slots[i][2] + (slots[i+1][0] if i + 1 < n else []))) for i in range(s0, s1))
```

```python
import sys
from prog import *
from prog import _insert, _rw
from layout import *
from asmlib import kernel_desc
from gen import f2u, hx, vr, ar, WS, srd, sdiv, chk_div, unpack, ln_stats, ln_write, mf, big, LOG2E, GC1, GC3, C1, C3, CV, FT, FH, FWB, FNB
NAME = "interleave_layers__linear_attn_block__glu_gated_geglu__prompt_kernel"
FL = 0x6000000
TS = 0x0E000000
DBG = False
SPIN = 3000000
MISC = 4 * CH
OPT = dict(presleep=10, rawA=1, ntq=1, nto=1, wokd=0, kbup=3, x0=2, xlead=80, p2end=30, l3=20, nh8=3, rot1=0, tx=0, tg=0, td=0, th=0, R=48, x8=1, vsa=0, st0=130, ct=0, kmap=2, wo2=0, tb=0, slp1=6, kax0=6, kalim=110)
class G:
    nlab = 0
    tail = []
def stamp(a, i):
    if not DBG: return
    a("s_memtime s[96:97]" if DBG == 2 else "s_memrealtime s[96:97]"); a("s_lshl_b32 s98, s13, 5"); a(f"s_add_u32 s98, s98, {i}"); a("s_waitcnt lgkmcnt(0)")
    a("s_mov_b32 s99, m0"); a("s_mov_b32 m0, s98"); a("s_nop 0"); a("v_writelane_b32 v15, s96, m0"); a("s_mov_b32 m0, s99"); a("s_nop 0")
def stamp_ops(i):
    p = Prog(); stamp(p, i); return [x.txt for x in p.ins]
def flag_base(a, sreg, phase, layer=None):
    if layer is None:
        a(f"s_lshl_b32 s{sreg}, s13, 20"); a(f"s_add_u32 s{sreg}, s{sreg}, {hx(FL + phase * 131072)}")
    else: a(f"s_mov_b32 s{sreg}, {hx(FL + layer * 0x100000 + phase * 131072)}")
def poll_issue(vdst, vaddr, sreg):
    return f"buffer_load_dword v{vdst}, v{vaddr}, {WS}, s{sreg} offen sc1"
def poll_check(vdst, vaddr, sreg):
    G.nlab += 1; n = G.nlab
    G.tail += [f"Lsp{n}:", "s_mov_b32 s95, 0", f"Lsl{n}:", poll_issue(vdst, vaddr, sreg), "s_add_u32 s95, s95, 1", f"s_cmp_gt_u32 s95, {SPIN}",
               "s_waitcnt vmcnt(0)", f"s_cbranch_scc1 Lok{n}", f"v_cmp_ne_u32 vcc, v12, v{vdst}", "s_nop 1", f"s_cbranch_vccnz Lsl{n}", f"s_branch Lok{n}"]
    return [f"v_cmp_ne_u32 vcc, v12, v{vdst}", f"s_cbranch_vccnz Lsp{n}", f"Lok{n}:"]
def poll(a, vdst, vaddr, sreg, sleep=None):
    sleep = OPT["presleep"] if sleep is None else sleep
    if sleep: a(f"s_sleep {sleep}")
    a(poll_issue(vdst, vaddr, sreg)); a.ext(poll_check(vdst, vaddr, sreg))
def publish(sreg, v=13):
    return f"buffer_store_dword v12, v{v}, {WS}, s{sreg} offen sc1"
def spread(slots, ops, s0, s1, mod=4, rem=3):
    pos = [i for i in range(s0, s1) if i % mod == rem]
    for j, o in enumerate(ops): slots[pos[j * len(pos) // len(ops)]][2].append(o)
def put(slots, p, op, lo, hi):
    best = None
    for g in sorted(range(lo, hi + 1), key=lambda x: abs(x - p)):
        t = list(slots[g][2]); t.insert(_insert(t, _rw, op, _rw(op)), op)
        c = (max(0, gapcost(t) - max(2, gapcost([op]))), gapcost(t) - gapcost(slots[g][2]))
        if best is None or c < best[0]: best = (c, g, t)
    slots[best[1]][2][:] = best[2]
    return best[1]
def vspread(slots, ops, s0, s1):
    b = bundles(ops); last = s0 - 1
    for i, x in enumerate(b):
        p = s0 + 1 + (s1 - s0 - 3) * i // max(1, len(b) - 1) if len(b) > 1 else s0 + 1
        last = putb(slots, x, p, last, s1 - 1)
    return last
def putb(slots, x, p, last, hi):
    j = [cls(o) == "M" for o in x].index(True)
    for o in x[:j]:
        lo = min(hi, max(last, p - 3)); last = put(slots, p - 1, o, lo, max(lo, min(hi, p - 1)))
    lo = min(hi, max(last + 1, p - 1)); last = put(slots, p, x[j], lo, max(lo, min(hi, p + 1)))
    for o in x[j+1:]:
        lo = min(hi, last + 1); last = put(slots, lo, o, lo, min(hi, lo + 1))
    return last
def bundles(ops):
    out = []; pre = []
    for o in ops:
        t = o[0] if isinstance(o, tuple) else o
        if t.startswith("buffer_"): out.append(pre + [o]); pre = []
        elif "m0" in t or not out: pre.append(o)
        else: out[-1].append(o)
    return out
def vsched(slots, streams, s0, R):
    idx = [0] * len(streams); t = float(s0); late = []; lastp = [0] * len(streams)
    while any(i < len(st) for i, st in zip(idx, streams)):
        p = int(t)
        c = [(st[i][1], k) for k, (i, st) in enumerate(zip(idx, streams)) if i < len(st) and st[i][0] <= p - 2]
        if not c:
            t += 1; continue
        dl, k = min(c); b = streams[k][idx[k]][2]; idx[k] += 1
        lastp[k] = putb(slots, b, p, max(lastp[k], streams[k][idx[k]-1][0]), len(slots) - 1)
        late.append(dl - p); t += R
    return min(late), int(t)
def weave(base, extra, s0=0, s1=None):
    s1 = len(base) if s1 is None else s1
    out = list(base[:s0]); k = 0; n = s1 - s0
    for i in range(n):
        out.append(base[s0 + i])
        tgt = len(extra) * (i + 1) // n
        while k < tgt: out.append(extra[k]); k += 1
    return out + list(base[s1:])
def wave_is(a, w):
    a(f"s_cmp_eq_u32 s3, {w}"); a("s_cselect_b64 vcc, -1, 0")
EPS6 = hx(f2u(1e-6))
def phi_ops(src, dst, tmp):
    o = []; n = len(src)
    for i in range(n): o.append(f"v_mul_f32 v{tmp[i]}, {hx(f2u(LOG2E))}, v{src[i]}")
    for i in range(n):
        o.append(f"v_exp_f32 v{tmp[i]}, v{tmp[i]} clamp")
        o.append(f"v_max_f32 v{dst[i]}, {EPS6}, v{src[i]}")
    for i in range(n): o.append(f"v_add_f32 v{dst[i]}, v{dst[i]}, v{tmp[i]}")
    return o
def perms(R, O, i, nd=4):
    return [f"v_perm_b32 v{O+m}, v{R+nd*(2*m+1)+(i>>1)}, v{R+nd*(2*m)+(i>>1)}, s{62+(i&1)}" for m in range(4)]
def tokgroup_addr(a, sG):
    a(f"s_lshr_b32 s20, s{sG}, 1"); a(f"s_mul_i32 s20, s20, {72*256}")
    a(f"s_and_b32 s21, s{sG}, 1"); a("s_lshl_b32 s21, s21, 7"); a("s_add_u32 s20, s20, s21")
    a(f"s_mul_i32 s21, s3, {24*256}"); a("s_add_u32 s20, s20, s21")
    a("v_and_b32 v7, 7, v1"); a("v_lshrrev_b32 v6, 3, v1"); a("v_lshlrev_b32 v6, 8, v6")
    a("v_lshl_add_u32 v5, v7, 4, v6"); a("v_add_u32 v5, s20, v5")
    a(f"s_lshl_b32 s21, s{sG}, 7"); a("v_lshl_add_u32 v7, v7, 4, s21")
    a("v_cmp_gt_u32 vcc, 8, v0"); a("v_cndmask_b32 v6, v14, v7, vcc")
LNS = MISC + 14336
def WOA(n, ks): return ar(144 + (ks * 2 + n) * 4) if ks < 9 else ar(((ks - 9) * 2 + n) * 4)
W8 = lambda i: ar(216 + 4 * i) if i < 4 else ar(232, 2)
WM = lambda i: ar(236 + 4 * i) if i < 4 else ar(234, 2)
RAWB = 80

RA = 220
def wq_task(a):
    a("s_lshl_b32 s36, s15, 2"); a("s_add_u32 s36, s36, s3"); a("s_mul_i32 s37, s14, 126"); a("s_add_u32 s37, s37, s36")
    chk_div(14, 1024)
    sdiv(a, 38, 37, 14, 39)
    a("s_lshl_b32 s39, s39, 3"); a("v_add_u32 v5, s39, v17")
    assert all((x * 37) >> 8 == x // 7 for x in range(90)) and all((x * 147) >> 10 == x // 7 for x in range(112))
    a("v_mul_u32_u24 v6, 147, v5"); a("v_lshrrev_b32 v6, 10, v6"); a("v_mul_u32_u24 v7, 7, v6"); a("v_sub_u32 v5, v5, v7")
    a("v_cmp_gt_u32 vcc, 6, v5"); a("v_lshlrev_b32 v7, 1, v16"); a("v_mul_u32_u24 v11, 36, v6")
    a("v_cndmask_b32 v8, v16, v5, vcc"); a("v_cndmask_b32 v7, 16, v7, vcc")
    a("v_lshrrev_b32 v9, 1, v8"); a("v_add_u32 v9, 1, v9"); a("v_cmp_gt_u32 vcc, 3, v9"); a("v_mul_u32_u24 v10, 576, v9")
    a("v_and_b32 v9, 1, v8"); a("v_mad_u32_u24 v7, v9, 18, v7"); a("v_cndmask_b32 v10, 0, v10, vcc")
    a("v_cmp_gt_u32 vcc, 6, v8"); a("v_add3_u32 v7, v7, v10, v11"); a("v_lshlrev_b32 v7, 1, v7")
    a("s_cmp_lt_u32 s36, 126"); a("s_cselect_b64 s[46:47], -1, 0"); a("s_and_b64 vcc, vcc, s[46:47]")
    a("v_cndmask_b32 v7, v14, v7, vcc")
    a(f"s_mul_i32 s42, s38, {8*3456}")
def wq_loads(a):
    for e in range(8):
        a(f"buffer_load_dword v{32+e}, v7, s[28:31], s42 offen{' nt' if OPT.get('ntq', 0) else ''}"); a("s_add_u32 s42, s42, 3456")
    a("s_lshr_b32 s40, s38, 3"); a("s_mul_i32 s41, s40, 5"); a("s_lshl_b32 s40, s40, 1"); a("s_add_u32 s40, s40, 41")
    a("v_min_u32 v9, 4, v5"); a("v_add_u32 v9, s41, v9"); a("v_add_u32 v10, s40, v5"); a("v_lshrrev_b32 v11, 1, v5"); a("v_cmp_eq_u32 vcc, 2, v11")
    a(f"v_mul_u32_u24 v6, {WQ_P}, v6"); a("v_lshl_add_u32 v6, v16, 4, v6")
    a("v_cndmask_b32 v9, v9, v10, vcc"); a("v_lshl_add_u32 v9, v9, 11, v6"); a("v_cndmask_b32 v9, v14, v9, s[46:47]")
    a("s_and_b32 s44, s38, 7"); a("s_lshl_b32 s44, s44, 8")
def wq_stores(a):
    for i in range(2):
        a.ext(perms(32, 120 + 4 * i, i, nd=1))
        a(f"buffer_store_dwordx4 {vr(120+4*i)}, v9, {WS}, s44 offen offset:{i*128} sc1")
def tagcalc(a):
    a("s_mov_b32 s16, 1664525"); a("v_mul_lo_u32 v12, v12, s16"); a("v_add_u32 v12, 1013904223, v12")

def gu_rot(a, sfk, sspan, sbase, tmp, out):
    a(f"s_lshr_b32 s{sfk}, s{sfk}, 1"); a(f"s_and_b32 s{tmp}, s{sspan}, 1"); a(f"s_lshl_b32 s{tmp}, s{tmp}, 2")
    if OPT.get("rot1", 1): a(f"s_sub_u32 s{sfk}, s{sfk}, s{tmp}")
    for i2 in range(4):
        if OPT.get("rot1", 1):
            a(f"s_sub_u32 s{out+i2}, s{sfk}, {i2}"); a(f"s_add_u32 s{tmp}, s{out+i2}, 9"); a(f"s_min_u32 s{out+i2}, s{out+i2}, s{tmp}")
        else: a(f"s_mov_b32 s{out+i2}, s{sfk}")
        a(f"s_lshl_b32 s{out+i2}, s{out+i2}, 12"); a(f"s_add_u32 s{out+i2}, s{out+i2}, s{sbase}")
        if i2: a(f"s_add_u32 s{out+i2}, s{out+i2}, {i2*9*CH}")

def rawA_setup(a):
    chk_div(56, 1024)
    a("s_lshl_b32 s84, s2, 2"); a("s_add_u32 s84, s84, s3"); sdiv(a, 85, 84, 56, 86)
    a(f"v_mul_u32_u24 v217, {8*9216}, v17"); a("v_lshl_add_u32 v217, v16, 4, v217")
    a("v_lshlrev_b32 v218, 8, v17"); a("v_lshl_add_u32 v218, v16, 4, v218")
    a("s_cmp_lt_u32 s84, 1008"); a("s_cselect_b64 vcc, -1, 0"); a("v_cndmask_b32 v217, v14, v217, vcc"); a("v_cndmask_b32 v218, v14, v218, vcc")
    a("s_lshr_b32 s88, s85, 1"); a(f"s_mul_i32 s88, s88, {64*9216}"); a("s_lshl_b32 s89, s86, 7"); a("s_add_u32 s88, s88, s89")
    a("s_bitcmp1_b32 s85, 0"); a("s_cselect_b32 s56, s74, s72"); a("s_cselect_b32 s57, s75, s73"); a(f"s_mov_b32 s58, {576*4608*2}"); a("s_mov_b32 s59, 0x20000")
    raw = []
    for e in range(8): raw += [f"buffer_load_dwordx4 {vr(RA+4*e)}, v217, s[56:59], s88 offen{' nt' if OPT.get('ntA', 1) else ''}", "s_add_u32 s88, s88, 9216"]
    G.rawA = raw
    a("s_and_b32 s87, s86, 7"); a(f"s_mul_i32 s87, s87, {4*9*CH}"); a("s_lshr_b32 s89, s86, 3"); a(f"s_mul_i32 s89, s89, {CH}"); a("s_add_u32 s87, s87, s89")
    a("s_and_b32 s89, s85, 1"); a("s_lshl_b32 s89, s89, 11"); a("s_add_u32 s87, s87, s89"); a(f"s_add_u32 s87, s87, {WGU}")
    gu_rot(a, 85, 86, 87, 89, 90)
def rawA_stores():
    f = []
    for i in range(8):
        f += perms(RA, 252, i) + [f"buffer_store_dwordx4 v[252:255], v218, {WS}, s{90+(i>>1)} offen offset:{(i&1)*128} sc1"]
    return f

def p0(a):
    mode = OPT.get("rawA", 0)
    a("v_and_b32 v16, 7, v1"); a("v_lshrrev_b32 v17, 3, v1")
    a("s_mov_b32 s62, 0x05040100"); a("s_mov_b32 s63, 0x07060302")
    a("v_mov_b32 v18, 0"); a(f"s_mov_b32 s16, {EPOCH}")
    a("s_lshl_b32 s17, s14, 5"); a("s_add_u32 s17, s17, s15")
    a("v_mul_u32_u24 v19, 1152, v17"); a("v_lshl_add_u32 v19, v16, 4, v19")
    a(f"s_mul_i32 s18, s17, {8*1152}"); a("s_mul_i32 s19, s3, 384"); a("s_add_u32 s18, s18, s19")
    wave_is(a, 3); a("v_cndmask_b32 v19, v19, v14, vcc")
    wq_task(a)
    a("s_waitcnt lgkmcnt(0)")
    srd(a, 24, 64, 2048 * 576 * 2)
    for i in range(3): a(f"buffer_load_dwordx4 {vr(20+4*i)}, v19, s[24:27], s18 offen offset:{128*i}{' nt' if OPT.get('ntx', 1) else ''}")
    srd(a, 28, 66, 576 * 1728 * 2); srd(a, 8, 4, WS_SIZE)
    a(f"buffer_load_dword v12, v18, {WS}, s16 offen sc1")
    if OPT.get("tlb0"):
        pages = [0, 1, 10, 11, 13, 31, 48, 48] if OPT["tlb0"] == 1 else [0, 1, 10, 11, 13, 31, 48, 2, 3, 4, 5, 6, 12, 7, 8, 9]
        a("v_mov_b32 v216, v14")
        for i, p in enumerate(pages):
            a(f"s_mov_b32 s16, {p * 0x200000 + 0x1FFF80}"); a(f"v_writelane_b32 v216, s16, {i}")
        a(f"buffer_load_dword v219, v216, {WS}, 0 offen", "touch")
    wq_loads(a)
    stamp(a, 30)
    srd(a, 32, 68, 576 * 576 * 2)
    a("s_lshl_b32 s83, s2, 7"); a(f"s_add_u32 s83, s83, {hx(FL + 7 * 131072)}"); wave_is(a, 0); a("v_cndmask_b32 v54, v14, v13, vcc")
    a("s_cmp_eq_u32 s3, 3"); a("s_cbranch_scc1 Lp0_w3")
    chk_div(9, 700)
    a("s_mul_i32 s36, s15, 3"); a("s_add_u32 s36, s36, s3"); a("s_mul_i32 s37, s14, 81"); a("s_add_u32 s37, s37, s36")
    sdiv(a, 38, 37, 9, 39); a("s_lshr_b32 s40, s38, 2"); a("s_and_b32 s41, s38, 3")
    a("v_lshrrev_b32 v5, 2, v2"); a("v_and_b32 v6, 3, v2"); a("v_lshl_add_u32 v5, v5, 3, v6")
    a("v_lshrrev_b32 v6, 1, v3"); a("v_lshl_add_u32 v5, v6, 5, v5"); a("v_and_b32 v6, 1, v3"); a("v_lshl_add_u32 v5, v6, 2, v5")
    a("v_mul_u32_u24 v7, 9, v3")
    a("s_lshr_b32 s42, s39, 1"); a("s_mul_i32 s42, s42, 9"); a("s_and_b32 s43, s39, 1"); a("s_lshl_b32 s43, s43, 2"); a("s_add_u32 s42, s42, s43")
    a("s_cmp_lt_u32 s39, 8"); a("s_cselect_b64 vcc, -1, 0"); a("s_cselect_b32 s42, s42, 8")
    a("v_cndmask_b32 v5, v1, v5, vcc"); a("v_cndmask_b32 v7, v7, v3, vcc"); a("v_lshlrev_b32 v5, 1, v5")
    a(f"v_mul_u32_u24 v7, {18*1024}, v7"); a("v_lshl_add_u32 v7, v2, 4, v7")
    a(f"s_mul_i32 s48, s42, {18*1024}"); a("s_lshl_b32 s43, s38, 8"); a("s_add_u32 s48, s48, s43"); a(f"s_add_u32 s48, s48, {WO}")
    a("s_mul_i32 s42, s40, 36"); a("s_and_b32 s43, s41, 1"); a("s_lshl_b32 s43, s43, 3"); a("s_add_u32 s42, s42, s43"); a("s_lshr_b32 s43, s41, 1"); a("s_add_u32 s42, s42, s43")
    a("s_mul_i32 s43, s40, 288"); a("s_mul_i32 s45, s41, 18"); a("s_add_u32 s43, s43, s45"); a(f"s_sub_u32 s43, s43, {288*16-16}")
    a("s_cmp_lt_u32 s36, 81"); a("s_cselect_b64 vcc, -1, 0"); a("v_cndmask_b32 v5, v14, v5, vcc"); a("v_cndmask_b32 v53, v14, v7, vcc")
    a("s_cmp_lt_u32 s40, 16"); a("s_cselect_b32 s42, s42, s43")
    a("s_cselect_b32 s80, 2, 1"); a("s_cselect_b32 s81, 2, 71"); a("s_cselect_b32 s82, 12, 71")
    a("s_mul_i32 s42, s42, 1152"); a("s_lshl_b32 s43, s39, 7"); a("s_add_u32 s42, s42, s43")
    for r in (80, 81, 82): a(f"s_mul_i32 s{r}, s{r}, 1152")
    for e in range(8):
        a(f"buffer_load_ushort v{56+e}, v5, s[32:35], s42 offen{' nt' if OPT.get('nto', 0) else ''}")
        if e < 7: a(f"s_add_u32 s42, s42, s{80 if e % 2 == 0 else (82 if e == 3 else 81)}")
    if mode == 3: rawA_setup(a); a.ext(G.rawA)
    tokgroup_addr(a, 17)
    a("v_lshlrev_b32 v10, 5, v16"); a("v_lshl_add_u32 v10, v17, 2, v10")
    stamp(a, 27)
    for i in range(12): a(f"ds_bpermute_b32 v{68+i}, v10, v{20+i}")
    tagcalc(a)
    wq_stores(a)
    unpack(a, 80, 68, 12)
    a.ext(perms(56, 136, 0, nd=1))
    a(f"buffer_store_dwordx4 {vr(136)}, v53, {WS}, s48 offen sc1")
    ln_stats(a, 80, 104, LNS)
    a(f"s_mov_b32 s22, {LB0+XN}"); a(f"s_mov_b32 s23, {LB0+ST}")
    ln_write(a, 80, 104, 20, 5, 22, None, 6, 23)
    stamp(a, 28)
    a("s_waitcnt vmcnt(0)")
    a("s_branch Lp0_join")
    a("Lp0_w3:")
    a("s_getpc_b64 s[52:53]")
    a("s_mov_b32 s17, s6"); a("s_mov_b32 s18, s7")
    a("s_and_b32 s19, s17, 3")
    a("v_lshrrev_b32 v5, 2, v17"); a("v_mul_u32_u24 v5, 18, v5"); a("v_and_b32 v6, 3, v17"); a("v_lshl_add_u32 v5, v6, 1, v5")
    a("v_lshrrev_b32 v6, 1, v17"); a("v_mul_u32_u24 v6, 72, v6"); a("v_and_b32 v7, 1, v17"); a("v_add_u32 v6, v6, v7")
    a("s_mul_i32 s20, s18, 36"); a("s_and_b32 s21, s19, 1"); a("s_lshl_b32 s21, s21, 3"); a("s_add_u32 s20, s20, s21"); a("s_lshr_b32 s21, s19, 1"); a("s_add_u32 s20, s20, s21")
    a("s_lshr_b32 s21, s18, 3"); a("s_mul_i32 s21, s21, 288"); a("s_mul_i32 s22, s19, 18"); a("s_add_u32 s21, s21, s22"); a("s_add_u32 s21, s21, 16")
    a("s_lshr_b32 s22, s18, 2"); a("s_add_u32 s22, s22, 16")
    a("s_cmp_lt_u32 s17, 4"); a("s_cselect_b64 vcc, -1, 0"); a("s_cselect_b32 s20, s20, s21"); a("s_cselect_b32 s22, s18, s22")
    a("v_cndmask_b32 v5, v6, v5, vcc"); a("v_add_u32 v5, s20, v5"); a("v_mul_u32_u24 v5, 1152, v5"); a("v_lshl_add_u32 v5, v16, 4, v5")
    a("s_and_b32 s21, s18, 3"); a("s_lshr_b32 s23, s17, 3"); a("s_or_b32 s21, s21, s23"); a("s_cmp_eq_u32 s21, 0"); a("s_cselect_b64 s[46:47], -1, 0"); a("s_or_b64 vcc, vcc, s[46:47]")
    a("v_cndmask_b32 v5, v14, v5, vcc")
    a("v_lshlrev_b32 v6, 1, v17"); a("v_lshl_add_u32 v6, v16, 4, v6"); a("v_cmp_gt_u32 s[46:47], 2, v16"); a("s_and_b64 vcc, vcc, s[46:47]"); a("v_cndmask_b32 v8, v14, v6, vcc")
    a("s_lshl_b32 s22, s22, 7"); a("s_lshl_b32 s21, s19, 5"); a("s_add_u32 s22, s22, s21"); a(f"s_add_u32 s22, s22, {WBAR}")
    a("s_lshr_b32 s18, s2, 7"); a(f"s_mul_i32 s18, s18, {LBS}"); a("s_and_b32 s19, s2, 127"); a("s_min_u32 s19, s19, 117"); a(f"s_mul_i32 s19, s19, {24*16}")
    a("s_add_u32 s18, s18, s19"); a(f"s_add_u32 s18, s18, {LB0+KV}")
    a("s_and_b32 s19, s2, 127"); a("s_cmp_lt_u32 s19, 118"); a("s_cselect_b32 s19, 24, 0"); a("v_cmp_gt_u32 vcc, s19, v1")
    for i in range(4): a(f"v_mov_b32 v{64+i}, 0")
    a("v_cndmask_b32 v10, v14, v4, vcc")
    a("s_mul_i32 s54, s15, 16"); a("v_add_lshl_u32 v19, v2, s54, 7"); a("v_min_u32 v19, CODE_LEN, v19")
    if mode == 3: rawA_setup(a); a.ext(G.rawA)
    a(f"s_waitcnt vmcnt({8 if mode == 3 else 0})")
    a(f"buffer_store_dwordx4 v[64:67], v10, {WS}, s18 offen sc1")
    tagcalc(a)
    wq_stores(a)
    for i in range(9): a(f"buffer_load_dwordx4 {vr(140+4*i)}, v5, s[32:35], 0 offen offset:{128*i}")
    a("global_load_dword v219, v19, s[52:53]", "touch")
    a("s_barrier")
    a("s_waitcnt vmcnt(10)")
    p = Prog()
    p("s_mov_b32 s16, 0x3f803f80"); p("v_mov_b32 v20, 0"); p("v_mov_b32 v21, 0")
    for i in range(36): p(f"v_dot2_f32_bf16 v{20+(i&1)}, v{140+i}, s16, v{20+(i&1)}")
    p("v_add_f32 v20, v20, v21")
    for d in ("quad_perm:[1,0,3,2]", "quad_perm:[2,3,0,1]", "row_half_mirror"): p(f"v_add_f32_dpp v20, v20, v20 {d} row_mask:0xf bank_mask:0xf")
    p(f"v_mul_f32 v20, {hx(f2u(1/576))}, v20"); p("v_cvt_pk_bf16_f32 v21, v20, v20"); p("v_lshlrev_b32 v22, 16, v21"); p("v_sub_f32 v22, v20, v22")
    p("v_and_b32 v23, 7, v1"); p("v_cmp_eq_u32 vcc, 0, v23"); p("v_cvt_pk_bf16_f32 v22, v22, v22"); p("v_cndmask_b32 v21, v22, v21, vcc")
    p(f"buffer_store_short v21, v8, {WS}, s22 offen sc1")
    G.wbar = [x.txt for x in p.ins]
    a("Lp0_join:")
    a("s_barrier")
    a(publish(83, 54))
    stamp(a, 29)
    if mode != 3: rawA_setup(a)
    flag_base(a, 29, 7, 0); a("v_lshlrev_b32 v16, 7, v0")
    if mode == 1: a.ext(G.rawA)
    if mode == 3: a.ext(rawA_stores())
    a("s_cmp_eq_u32 s3, 3"); a("s_cbranch_scc0 Lp0_nb")
    a.ext(G.wbar)
    a("Lp0_nb:")
    if OPT.get("tb", 1):
        batchb_src(a, "0")
        a("v_and_b32 v5, 7, v1"); a(f"v_mul_u32_u24 v5, {9216-16}, v5"); a("v_add_u32 v31, v254, v5")
    warm(a)
    ka_setup(a)
    poll(a, 18, 16, 29, max(0, OPT["presleep"] - 6))
    a("s_barrier")
    a("s_cmp_eq_u32 s2, 0"); a("s_cselect_b64 vcc, -1, 0"); a("v_cmp_eq_u32 s[48:49], 0, v0"); a("s_and_b64 vcc, vcc, s[48:49]")
    a("v_cndmask_b32 v16, v14, v0, vcc"); a(f"s_mov_b32 s30, {EPOCH}")
    a(f"buffer_store_dword v12, v16, {WS}, s30 offen sc1")

def warm(a):
    if not OPT.get("warm", 1): return
    for i in range(4): a(f"v_not_b32 v{20+i}, v12")
    a("v_lshrrev_b32 v24, 3, v1"); a("v_and_b32 v25, 7, v1"); a("v_lshlrev_b32 v25, 4, v25"); a("v_lshl_add_u32 v25, v24, 17, v25")
    a("v_cmp_gt_u32 vcc, 7, v24"); a("s_lshl_b32 s30, s2, 2"); a("s_add_u32 s30, s30, s3"); a("s_lshl_b32 s30, s30, 7"); a(f"s_add_u32 s30, s30, {FL}")
    a("v_cndmask_b32 v24, v14, v25, vcc")
    a(f"buffer_store_dwordx4 v[20:23], v24, {WS}, s30 offen sc1"); a("s_add_u32 s30, s30, 0x100000")
    a(f"buffer_store_dwordx4 v[20:23], v25, {WS}, s30 offen sc1")

KS0 = 54 * 1024
def wo_setup(a):
    a("s_and_b32 s39, s15, 3"); a("s_mul_i32 s39, s39, 9"); a("s_lshl_b32 s34, s3, 1"); a("s_add_u32 s34, s34, s39"); a(f"s_mul_i32 s34, s34, {18*1024}"); a(f"s_add_u32 s34, s34, {WO}")
    a(f"s_add_u32 s35, s34, {18*1024}")
    a(f"s_mul_i32 s39, s39, {18*1024}"); a(f"s_add_u32 s39, s39, {WO + 8*18*1024}"); a("s_lshl_b32 s36, s3, 12"); a("s_add_u32 s36, s36, s39")
    a("s_lshr_b32 s37, s3, 1"); a("s_lshl_b32 s37, s37, 10"); a("s_add_u32 s37, s37, s39"); a("s_and_b32 s38, s3, 1"); a("s_lshl_b32 s38, s38, 3"); a("s_add_u32 s37, s37, s38"); a("s_add_u32 s37, s37, 16384")

def ka_setup(a, wo=True):
    a("s_mov_b32 s16, s6"); a("s_mov_b32 s17, s7")
    a("s_lshl_b32 s18, s16, 2"); a("s_add_u32 s18, s18, s3")
    a(f"s_mul_i32 s20, s18, {2*72*256}"); a("s_add_u32 s20, s20, s12"); a(f"s_add_u32 s21, s20, {72*256}")
    a("v_add_u32 v5, 0x10000, v4"); a("v_add_u32 v26, 0x20000, v4")
    a("v_lshrrev_b32 v9, 4, v0")
    a("v_subrev_u32 v11, 160, v0"); a("v_lshrrev_b32 v20, 1, v11")
    a("v_cmp_gt_u32 s[42:43], 64, v11")
    a("s_mov_b32 s24, 0xB3A266"); a("v_lshrrev_b32 v22, 2, v2")
    a("v_cndmask_b32 v9, v9, v20, s[42:43]")
    a("v_lshlrev_b32 v20, 2, v9"); a("v_lshrrev_b32 v20, v20, s24"); a("v_and_b32 v20, 15, v20")
    a("v_lshrrev_b32 v21, v9, 50"); a("v_and_b32 v21, 1, v21")
    a("v_lshlrev_b32 v22, 8, v22"); a("v_and_b32 v23, 3, v2"); a("v_lshl_add_u32 v22, v23, 2, v22")
    a("v_lshl_add_u32 v22, v21, 10, v22"); a("v_add_u32 v22, 2048, v22")
    a("v_and_b32 v23, 1, v0"); a("v_lshlrev_b32 v24, 9, v23"); a("v_lshl_add_u32 v24, v21, 2, v24"); a("v_add_u32 v24, 6144, v24")
    a("v_cndmask_b32 v22, v22, v24, s[42:43]"); a("v_lshl_add_u32 v22, v20, 4, v22")
    a("v_subrev_u32 v11, 96, v0"); a("v_cmp_gt_u32 vcc, 64, v11")
    a("v_lshrrev_b32 v24, 5, v11"); a("v_lshlrev_b32 v24, 9, v24"); a("v_bfe_u32 v25, v11, 1, 4"); a("v_lshl_add_u32 v24, v25, 4, v24")
    a("v_mul_u32_u24 v25, 1028, v23"); a("v_add_u32 v24, v24, v25"); a("v_add_u32 v24, 4096, v24")
    a("v_cndmask_b32 v6, v22, v24, vcc")
    a("v_and_b32 v6, 0x1fff, v6"); a(f"v_add_u32 v27, {MISC}, v6"); a(f"v_add_u32 v6, {KS0}, v6")
    a("s_and_b32 s24, s3, 1"); a("s_mul_i32 s24, s24, 7168"); a("s_lshr_b32 s25, s3, 1"); a(f"s_mul_i32 s25, s25, {MISC-KS0}"); a("s_add_u32 s24, s24, s25"); a(f"s_add_u32 s24, s24, {KS0}")
    a("v_add_u32 v7, s24, v4")
    a("v_cmp_gt_u32 vcc, 172, v0"); a("v_lshlrev_b32 v9, 2, v0"); a(f"v_add_u32 v8, {KS0}, v9"); a(f"v_add_u32 v28, {MISC}, v9")
    a("v_cndmask_b32 v10, v14, v9, vcc")
    a("v_and_b32 v20, 7, v1"); a("v_cmp_gt_u32 s[44:45], 2, v20"); a("v_cmp_eq_u32 s[46:47], 6, v2")
    a("v_and_b32 v21, 16, v1"); a("v_cmp_ne_u32 vcc, 0, v21")
    a("v_lshrrev_b32 v20, 5, v1"); a("v_lshl_add_u32 v20, v20, 4, v2"); a("v_lshlrev_b32 v20, 3, v20")
    a("v_cndmask_b32 v11, v14, v20, vcc")
    a(f"s_mul_i32 s25, s17, {KV_P}"); a("s_add_u32 s25, s25, s12"); a(f"s_add_u32 s25, s25, {KV}")
    a("s_lshl_b32 s26, s18, 15"); a("s_lshl_b32 s27, s17, 10"); a("s_add_u32 s26, s26, s27"); a("s_add_u32 s26, s26, s12"); a(f"s_add_u32 s26, s26, {PQM}"); a("s_add_u32 s28, s26, 16384")
    a("s_lshl_b32 s27, s18, 4"); a("s_add_u32 s27, s27, s17"); a("s_lshl_b32 s27, s27, 8"); a("s_add_u32 s27, s27, s12"); a(f"s_add_u32 s27, s27, {PQL}")
    if wo: wo_setup(a)
    a(f"s_mul_i32 s22, s17, {WQ_P}"); a("s_lshl_b32 s23, s3, 11"); a("s_add_u32 s22, s22, s23")

def wol(ks, va=4):
    o = [f"buffer_load_dwordx4 {WOA(n,ks)}, v{va}, {WS}, s{34+n} offen offset:{(ks&3)*1024} sc1" for n in range(2)]
    if ks & 3 == 3: o += [f"s_add_u32 s{34+n}, s{34+n}, 4096" for n in range(2)]
    return o
def wo_first(va=4):
    o = [x for ks in range(9) for x in wol(ks, va)]
    o += [f"buffer_load_dwordx4 {W8(i)}, v{va}, {WS}, s36 offen offset:{i*1024} sc1" for i in range(4)]
    o.append(f"buffer_load_dwordx2 {W8(4)}, v{va}, {WS}, s37 offen sc1")
    return o

def ka_body(a, first):
    stamp(a, 1)
    X = lambda t, ks: ar((ks * 2 + t) * 4)
    def xl(ks):
        o = [f"buffer_load_dwordx4 {X(t,ks)}, v4, {WS}, s{20+t} offen offset:{(ks&3)*1024} sc1" for t in range(2)]
        if ks & 3 == 3: o += ["s_add_u32 s20, s20, 4096", "s_add_u32 s21, s21, 4096"]
        return o
    def wr(i):
        return [f"s_add_u32 m0, s23, {((8*i + 72) % 144) * 1024}"] + \
               [(f"buffer_load_dwordx4 v4, {WS}, s22 offen offset:{j*1024} sc1 lds", f"q{i}") for j in range(2)] + ["s_add_u32 s22, s22, 8192"]
    ACC1 = 32; ACC2 = 72; WB = 96; NB = 12; OP = 144; TM = 164; KD = 180; GA = 164
    acc1 = lambda s, t: ACC1 + (s * 2 + t) * 4
    acc2 = lambda s, t: ACC2 + (s * 2 + t) * 4
    seq = []
    for kp in range(9):
        for s in range(5): seq.append((1, s, kp, [kp * 10 + s * 2, kp * 10 + s * 2 + 1]))
    for kp in range(9):
        for s, F in enumerate((4, 5, 6)): seq.append((2, s, kp, [wq_frag(F, 2 * kp), wq_frag(F, 2 * kp + 1)]))
    frs = [f for x in seq for f in x[3]]
    bars = {0: 2, 24: 5, 48: 8, 72: 11, 96: 15}
    seen = set()
    def rd(i):
        f = frs[i]; o = []
        if first:
            for b, r in bars.items():
                if f >= b and b not in seen:
                    seen.add(b); o += [f"WAITTAG q{r}", "s_barrier"]
        ad = ((f + 72) % 144) * 1024
        return o + [f"ds_read_b128 {vr(WB + 4*(i % NB))}, {['v4','v5','v26'][ad >> 16]} offset:{ad & 0xffff}"]
    if first:
        pre = wr(0) + wr(1) + wr(2) + xl(0) + xl(1) + xl(2) + xl(3) + wr(3) + wr(4) + wr(5) + xl(4) + xl(5) + xl(6) + xl(7)
        rest = wr(6) + wr(7) + wr(8) + xl(8) + xl(9) + xl(10) + xl(11) + wr(9) + wr(10) + wr(11) + xl(12) + xl(13) + xl(14) + xl(15) + xl(16) + xl(17) + wr(12) + wr(13) + wr(14) + wr(15)
        lim = OPT.get("ka0lim", 120)
    else:
        n0 = OPT.get("kax0", 8)
        pre = [o for ks in range(n0) for o in xl(ks)]; rest = [o for ks in range(n0, 18) for o in xl(ks)]
        lim = OPT.get("kalim", 90)
    RD = 8
    if first:
        a.ext(pre)
        for i in range(RD): a.ext(rd(i))
    else:
        a("s_barrier")
        a.ext(pre[:4])
        for i in range(RD): a.ext(rd(i))
        a.ext(pre[4:])
    slots = []
    wbr = lambda i: vr(WB + 4 * (i % NB))
    for gi, (ps, s, kp, _) in enumerate(seq):
        w = [wbr(2 * gi + kk) for kk in range(2)]
        for t in range(2):
            for kk in range(2):
                ks = 2 * kp + kk
                d = vr(acc1(s, t) if ps == 1 else acc2(s, t)); c = d if ks else "0"
                m = mf(d, X(t, ks), w[kk], c) if ps == 1 else mf(d, w[kk], X(t, ks), c)
                need = []
                if t == 0 and kk == 0:
                    if gi % 2 == 0: need += [wbr(2 * gi + x) for x in range(4)]
                    if ps == 1 and s == 0: need += [X(tt, 2 * kp + k2) for tt in range(2) for k2 in range(2)]
                post = []
                if kk == 0 and 2 * gi + RD + t < len(frs): post = rd(2 * gi + RD + t)
                slots.append([["NEED " + ", ".join(need)] if need else [], m, post])
    hoist_pre(slots)
    n1 = 45 * 4; NS = len(slots)
    vspread(slots, rest, 0, lim)
    w2 = [] if OPT.get("wo2", 1) else [o for ks in range(9, 18) for o in wol(ks)]
    if first:
        vspread(slots, wo_first(), lim + 4, n1 + OPT.get("wo0b", 20))
        normalize(slots)
        if OPT.get("rawA", 0) != 3: pack(slots, rawA_stores(), start=OPT.get("stA", lim), end=OPT.get("stE", n1), window=4)
    elif OPT.get("wo1", 1): vspread(slots, wo_first(), OPT.get("wo1a", 100), n1 + OPT.get("wo1b", 20))
    if w2: vspread(slots, w2, n1 + 26, NS - OPT.get("wo2e", 4))
    normalize(slots)
    f = []
    src = [acc1(4, 0) + j for j in range(8)]
    for s in (2, 3):
        for m in range(4): f.append(f"v_cvt_pk_bf16_f32 v{OP+4*s+m}, v{acc1(s,0)+2*m}, v{acc1(s,0)+2*m+1}")
    for s in range(2):
        sr = [acc1(s, 0) + j for j in range(8)]
        f += phi_ops(sr, sr, [TM + 8 * s + j for j in range(8)])
        for m in range(4): f.append(f"v_cvt_pk_bf16_f32 v{OP+4*s+m}, v{acc1(s,0)+2*m}, v{acc1(s,0)+2*m+1}")
    f += phi_ops(src, [TM + 8 + j for j in range(8)], [TM + j for j in range(8)])
    for j in range(8): f.append(f"v_cndmask_b32 v{src[j]}, v{src[j]}, v{TM+8+j}, s[44:45]")
    f.append(f"v_mov_b32 v{TM}, 0x3f803f80")
    for m in range(4): f.append(f"v_cvt_pk_bf16_f32 v{OP+16+m}, v{acc1(4,0)+2*m}, v{acc1(4,0)+2*m+1}")
    for m in range(4): f.append(f"v_cndmask_b32 v{OP+16+m}, v{OP+16+m}, v{TM}, s[46:47]")
    e1 = NS - OPT.get("kae", 26)
    lf = pack(slots, f, start=n1 + 2, end=e1)
    kvm = [[[], mf(vr(KD + 4 * i), vr(OP + 4 * x), vr(OP + 4 * y), "0"), []] for i, (x, y) in enumerate([(0, 2), (1, 3), (0, 4), (1, 4), (4, 2), (4, 3), (4, 4)])]
    slots[e1 + 2:e1 + 2] = kvm
    e2 = e1 + 2 + 7
    for i in range(7): slots[e2 + i][2].append((f"ds_write_b128 v7, {vr(KD+4*i)} offset:{i*1024}", "kvw"))
    e3 = min(len(slots) - 1, e2 + 10)
    slots[e3][2] += ["WAITTAG kvw", "s_barrier"]
    g = []
    for o, (a0, a1, off) in enumerate([("v8", "v28", 0), ("v8", "v28", 4), ("v6", "v27", 0)]):
        g += [f"ds_read2st64_b32 {vr(GA+4*o,2)}, {a0} offset0:{off} offset1:{off+28}", f"ds_read2st64_b32 {vr(GA+4*o+2,2)}, {a1} offset0:{off} offset1:{off+28}"]
    for i, x in enumerate(g): slots[min(len(slots) - 1, e3 + 1 + i // 2)][2].append(x)
    g = []
    for o in range(3):
        g += [f"v_add_f32 v{GA+4*o}, v{GA+4*o}, v{GA+4*o+1}", f"v_add_f32 v{GA+4*o+2}, v{GA+4*o+2}, v{GA+4*o+3}"]
    for o in range(3): g.append(f"v_add_f32 v{GA+4*o}, v{GA+4*o}, v{GA+4*o+2}")
    for o in range(3): g.append(f"buffer_atomic_add_f32 v{GA+4*o}, {'v10' if o == 2 else 'v9'}, {WS}, s25 offen offset:{1024*o}")
    pack(slots, g, start=min(len(slots) - 1, e3 + 8), front=True)
    print("ka est", est_cycles(slots, 0, n1), est_cycles(slots, n1, len(slots)), "left", lf)
    if DBG:
        slots[20][0][:0] = stamp_ops(23); slots[n1][0][:0] = stamp_ops(24)
    a.ext(flat(slots))
    stamp(a, 2)
    for t in range(2):
        qs = [acc2(s, t) + j for s in range(2) for j in range(4)] + [acc2(2, t) + j for j in range(2)]
        a.ext(phi_ops(qs, qs, [WB + j for j in range(10)]))
        for s in range(2):
            for m in range(2): a(f"v_cvt_pk_bf16_f32 v{OP+4*t+2*s+m}, v{acc2(s,t)+2*m}, v{acc2(s,t)+2*m+1}")
        a(f"buffer_store_dwordx4 {vr(OP+4*t)}, v4, {WS}, s{26+2*t} offen sc1")
        a(f"v_cvt_pk_bf16_f32 v{OP+8+t}, v{acc2(2,t)}, v{acc2(2,t)+1}")
    a(f"buffer_store_dwordx2 {vr(OP+8,2)}, v11, {WS}, s27 offen sc1")
    stamp(a, 3)

def batchb_src(a, sfx=''):
    a("s_lshl_b32 s61, s2, 2"); a("s_add_u32 s61, s61, s3")
    a("v_and_b32 v5, 7, v1"); a("v_lshrrev_b32 v6, 3, v1")
    a(f"s_mov_b32 s58, {576*4608*2}"); a("s_mov_b32 s59, 0x20000")
    a("s_cmp_lt_u32 s61, 648"); a(f"s_cbranch_scc1 Lbb_d{sfx}")
    a("s_sub_u32 s38, s61, 648"); a("s_lshr_b32 s39, s38, 4"); a("s_and_b32 s38, s38, 15")
    a("s_bitcmp1_b32 s39, 0"); a("s_cselect_b32 s56, s74, s72"); a("s_cselect_b32 s57, s75, s73")
    a("s_lshr_b32 s39, s39, 1"); a(f"s_mul_i32 s60, s39, {64*9216}"); a("s_lshl_b32 s38, s38, 7"); a("s_add_u32 s60, s60, s38"); a(f"s_add_u32 s60, s60, {56*128}")
    a(f"v_mul_u32_u24 v254, {8*9216}, v6"); a("v_lshl_add_u32 v254, v5, 4, v254")
    a(f"s_branch Lbb_e{sfx}")
    a(f"Lbb_d{sfx}:")
    chk_div(9, 648)
    sdiv(a, 38, 61, 9, 39)
    a("s_mov_b32 s56, s76"); a("s_mov_b32 s57, s77")
    a(f"s_mul_i32 s60, s38, {64*1152}")
    a("s_lshl_b32 s38, s39, 7"); a("s_add_u32 s60, s60, s38")
    a("v_mul_u32_u24 v254, 1152, v6"); a("v_lshl_add_u32 v254, v5, 4, v254")
    a(f"Lbb_e{sfx}:")
    a("s_cmp_lt_u32 s61, 936"); a("s_cselect_b32 s38, s13, 1"); a("s_cmp_eq_u32 s38, 0"); a("s_cselect_b64 vcc, -1, 0")
    a("v_cndmask_b32 v254, v14, v254, vcc")

BO = 196; BA = 212
def batchb_perm(a):
    for i in range(8): a(f"v_mov_b32 v{BA+i}, v14")
    a("s_lshl_b32 s38, s3, 12"); a(f"s_add_u32 s38, s38, {MISC}"); a("v_add_u32 v220, s38, v4")
    a("s_cmp_lt_u32 s61, 936"); a("s_cselect_b32 s38, s13, 1"); a("s_cmp_eq_u32 s38, 0"); a("s_cbranch_scc0 Lbp_e")
    R = 28
    for i in range(32): a(f"v_accvgpr_read_b32 v{R+i}, a{RAWB+i}")
    for i in range(8):
        a.ext(perms(R, BO + 4 * i if i < 4 else 76 + 4 * i, i))
        if i >= 4: a(f"ds_write_b128 v220, {vr(76+4*i)} offset:{(i-4)*1024}", "phantom")
    a("v_and_b32 v28, 7, v1"); a("v_lshrrev_b32 v29, 3, v1")
    a("s_cmp_lt_u32 s61, 648"); a("s_cbranch_scc1 Lbp_d")
    a("s_sub_u32 s38, s61, 648"); a("s_lshr_b32 s39, s38, 4"); a("s_and_b32 s52, s38, 7"); a("s_bfe_u32 s53, s38, 0x10003")
    a(f"s_mul_i32 s52, s52, {4*9*CH}"); a(f"s_mul_i32 s53, s53, {CH}"); a("s_add_u32 s52, s52, s53"); a("s_and_b32 s53, s39, 1"); a("s_lshl_b32 s53, s53, 11"); a("s_add_u32 s52, s52, s53"); a(f"s_add_u32 s52, s52, {WGU+7*CH}")
    gu_rot(a, 39, 38, 52, 53, 90)
    a("v_lshlrev_b32 v30, 8, v29"); a("v_lshl_add_u32 v30, v28, 4, v30"); a("v_add_u32 v34, 128, v30")
    for i in range(8): a(f"v_add_u32 v{BA+i}, s{90+(i>>1)}, v{34 if i & 1 else 30}")
    a("s_branch Lbp_e")
    a("Lbp_d:")
    sdiv(a, 38, 61, 9, 39)
    a("s_lshr_b32 s52, s38, 3"); a("s_and_b32 s53, s38, 1"); a("s_lshl_b32 s90, s52, 1"); a("s_add_u32 s90, s90, s53")
    a(f"s_mul_i32 s91, s90, {18*1024}"); a("s_lshl_b32 s90, s90, 11"); a(f"s_add_u32 s90, s90, {7*CH - 14*2048}")
    a("s_cmp_lt_u32 s52, 7"); a("s_cselect_b32 s52, s91, s90"); a("s_cselect_b32 s90, 11, 13")
    a("s_bfe_u32 s53, s38, 0x20001"); a(f"s_mul_i32 s53, s53, {36*CH}"); a("s_add_u32 s52, s52, s53"); a(f"s_add_u32 s52, s52, {WD}")
    a("v_lshrrev_b32 v30, 2, v29"); a("v_lshlrev_b32 v30, 10, v30"); a("v_and_b32 v31, 3, v29")
    a("s_cmp_eq_u32 s39, 8"); a("s_cbranch_scc1 Lbp_8")
    a("s_lshr_b32 s53, s39, 1"); a(f"s_mul_i32 s53, s53, {9*CH}"); a("s_add_u32 s52, s52, s53"); a("s_and_b32 s53, s39, 1"); a("s_lshl_b32 s53, s53, 2"); a("s_lshl_b32 s53, s53, s90"); a("s_add_u32 s52, s52, s53")
    a("v_lshrrev_b32 v32, 2, v28"); a("v_lshlrev_b32 v32, 1, v32"); a("v_lshl_add_u32 v30, v32, s90, v30"); a("v_add_u32 v30, s52, v30"); a("s_lshl_b32 s91, 1, s90")
    a("v_and_b32 v32, 3, v28"); a("v_lshl_add_u32 v32, v31, 2, v32")
    for j in range(4):
        a(f"v_add_u32 v33, {4*j}, v32"); a("v_and_b32 v33, 15, v33"); a("v_lshl_add_u32 v33, v33, 4, v30")
        a(f"v_add_u32 v{BA+j}, {j*256}, v33"); a(f"v_add_u32 v{BA+4+j}, s91, v{BA+j}")
    a("s_branch Lbp_e")
    a("Lbp_8:")
    a("s_lshl_b32 s91, 8, s90"); a("s_add_u32 s52, s52, s91")
    a("v_lshrrev_b32 v32, 1, v28"); a(f"v_mul_u32_u24 v32, {9*CH}, v32"); a("v_add3_u32 v30, v30, v32, s52")
    a("v_and_b32 v32, 1, v28"); a("v_lshl_add_u32 v32, v31, 1, v32"); a("v_xor_b32 v33, 4, v32")
    a("v_lshl_add_u32 v32, v32, 4, v30"); a("v_lshl_add_u32 v33, v33, 4, v30")
    for i in range(8): a(f"v_add_u32 v{BA+i}, {i*128}, v{32+((i>>1)&1)}")
    a("Lbp_e:")

def ffn_ids(a, fq, B):
    mp = OPT.get("fmap", 0)
    if mp == 0:
        a(f"s_and_b32 s{fq}, s14, 3")
        if B: a(f"s_and_b32 s{B}, s14, 4"); a("s_lshr_b32 s19, s15, 3"); a(f"s_add_u32 s{B}, s{B}, s19")
    elif mp == 1:
        a(f"s_and_b32 s{fq}, s14, 1"); a(f"s_lshl_b32 s{fq}, s{fq}, 1"); a("s_lshr_b32 s19, s15, 4"); a(f"s_add_u32 s{fq}, s{fq}, s19")
        if B: a(f"s_and_b32 s{B}, s14, 6"); a("s_bfe_u32 s19, s15, 0x10003"); a(f"s_add_u32 s{B}, s{B}, s19")
    else:
        a(f"s_lshr_b32 s{fq}, s15, 3")
        if B: a(f"s_mov_b32 s{B}, s14")

def code_touch(a, l0, l1, va, sink):
    G.nlab += 1
    a("s_getpc_b64 s[52:53]"); a(f"Lct{G.nlab}:")
    a("s_lshl_b32 s54, s15, 2"); a("s_add_u32 s54, s54, s3"); a("s_mul_i32 s54, s54, 3")
    a(f"v_min_u32 v{va}, 2, v1"); a(f"v_add_lshl_u32 v{va}, v{va}, s54, 7"); a(f"v_min_u32 v{va}, {l1}-{l0}-4, v{va}"); a(f"v_add_u32 v{va}, {l0}-Lct{G.nlab}, v{va}")
    a(f"global_load_dword v{sink}, v{va}, s[52:53]", "touch")

def m_kb(a):
    flag_base(a, 33, 1); a("s_lshl_b32 s29, s2, 9"); a("s_add_u32 s29, s29, s33")
    wave_is(a, 0); a("v_cndmask_b32 v11, v14, v13, vcc")
    batchb_src(a)
    a("s_waitcnt vmcnt(0) lgkmcnt(0)"); a("s_barrier")
    a(publish(29, 11))
    stamp(a, 4)
    if OPT.get("wo2", 1):
        for ks in range(9, 18): a.ext(wol(ks))
    if OPT.get("ct", 1): code_touch(a, "Lffn", "Lkd_w3", 5, 166)
    a("s_lshl_b32 s16, s6, 2"); a("s_lshr_b32 s18, s7, 2"); a("s_add_u32 s16, s16, s18")
    a("s_and_b32 s17, s15, 3")
    KVR = 16; PQ = 80; PL = 144; RS = 152; R8 = 160; SD = 164; AO = 168; D = 200; OU = 224; AD = 248
    a("v_lshrrev_b32 v10, 1, v3"); a("v_lshl_add_u32 v9, v10, 4, v2"); a("v_lshlrev_b32 v9, 3, v9")
    a(f"s_mul_i32 s38, s16, {2*72*256}"); a("s_add_u32 s38, s38, s12")
    a("s_lshl_b32 s39, s17, 2"); a("s_add_u32 s39, s39, s3"); a("s_lshl_b32 s39, s39, 10"); a("s_add_u32 s26, s38, s39")
    a(f"s_add_u32 s27, s26, {72*256}"); a("s_lshl_b32 s39, s17, 9"); a("s_add_u32 s30, s38, s39"); a("s_add_u32 s30, s30, 16384"); a(f"s_add_u32 s31, s30, {72*256}")
    a("v_lshlrev_b32 v5, 1, v9"); a("v_and_b32 v6, 1, v3"); a("v_lshl_add_u32 v5, v6, 3, v5"); a("v_cmp_eq_u32 s[50:51], 1, v6")
    wave_is(a, 0); a("v_cndmask_b32 v5, v14, v5, vcc")
    a("s_lshl_b32 s32, s16, 9"); a("s_add_u32 s32, s32, s12"); a(f"s_add_u32 s32, s32, {ST+4}"); a("v_lshlrev_b32 v6, 4, v2")
    for t in range(2):
        a(f"buffer_load_dwordx4 {vr(RS+4*t)}, v4, {WS}, s{26+t} offen sc1")
        a(f"buffer_load_dwordx2 {vr(R8+2*t,2)}, v5, {WS}, s{30+t} offen sc1")
        a(f"buffer_load_dword v{SD+t}, v6, {WS}, s32 offen offset:{256*t} sc1")
    a(f"s_mul_i32 s20, s3, {4*KV_P}"); a("s_add_u32 s20, s20, s12"); a(f"s_add_u32 s20, s20, {KV}")
    a("v_and_b32 v5, 3, v2"); a("v_bfe_u32 v6, v2, 2, 1"); a("v_cmp_gt_u32 s[42:43], 2, v5"); a("v_lshl_add_u32 v7, v6, 1, v5")
    a("v_cmp_gt_u32 vcc, 8, v2"); a("v_cndmask_b32 v7, v7, v5, s[42:43]")
    a("v_cndmask_b32 v6, v6, v5, s[42:43]"); a("v_cmp_eq_u32 s[44:45], 0, v6")
    a("v_lshlrev_b32 v8, 6, v7"); a("v_lshl_add_u32 v8, v3, 4, v8")
    a("v_lshlrev_b32 v7, 3, v7"); a("v_lshl_add_u32 v10, v10, 2, v7")
    a("s_or_b64 s[46:47], vcc, s[42:43]"); a("s_orn2_b64 s[48:49], s[42:43], vcc")
    a(f"v_cndmask_b32 v{AD}, v14, v8, s[46:47]"); a(f"v_cndmask_b32 v{AD+1}, v14, v8, s[48:49]")
    a(f"v_cndmask_b32 v{AD+2}, v14, v10, s[46:47]"); a(f"v_cndmask_b32 v{AD+3}, v14, v10, s[48:49]")
    a("v_cndmask_b32 v10, v14, v9, s[50:51]")
    a("s_lshl_b32 s21, s16, 15"); a("s_lshl_b32 s22, s3, 12"); a("s_add_u32 s21, s21, s22"); a("s_add_u32 s21, s21, s12"); a(f"s_add_u32 s21, s21, {PQM}"); a("s_add_u32 s22, s21, 16384")
    a("s_lshl_b32 s23, s16, 12"); a("s_lshl_b32 s24, s3, 10"); a("s_add_u32 s23, s23, s24"); a("s_add_u32 s23, s23, s12"); a(f"s_add_u32 s23, s23, {PQL}")
    OX = 3 * CH; T8 = MISC; DM = MISC + 8192
    a("s_lshl_b32 s37, s3, 13"); a(f"s_add_u32 s37, s37, {OX}"); a("v_add_u32 v8, s37, v4")
    a("s_lshr_b32 s37, s3, 1"); a("s_lshl_b32 s37, s37, 11"); a("s_and_b32 s39, s3, 1"); a("s_lshl_b32 s39, s39, 3"); a("s_add_u32 s37, s37, s39")
    a(f"s_add_u32 s37, s37, {OX+32768}"); a("v_add_u32 v246, s37, v4"); a(f"v_add_u32 v247, {OX}, v4")
    a("v_lshlrev_b32 v252, 5, v3"); a("v_lshl_add_u32 v252, v2, 4, v252"); a("v_cmp_gt_u32 vcc, 2, v2")
    a("s_lshl_b32 s34, s3, 9"); a(f"s_add_u32 s34, s34, {WBAR}"); a("v_cndmask_b32 v252, v14, v252, vcc")
    a("s_lshl_b32 s35, s3, 7"); a("s_add_u32 s35, s35, s39"); a(f"s_add_u32 s35, s35, {WBAR+2048}")
    a("s_lshl_b32 s37, s3, 11"); a(f"s_add_u32 s37, s37, {T8}"); a("v_add_u32 v253, s37, v4")
    a("s_lshl_b32 s37, s3, 2"); a(f"s_add_u32 s37, s37, {DM}"); a("v_lshlrev_b32 v255, 9, v3"); a("v_lshl_add_u32 v255, v2, 4, v255"); a("v_add_u32 v255, s37, v255")
    km = OPT.get("kmap", 1)
    a(f"v_lshrrev_b32 v7, {km+3}, v1"); a(f"v_lshlrev_b32 v7, {km}, v7"); a(f"v_bfe_u32 v11, v1, 2, {km+1}"); a(f"v_lshl_add_u32 v7, v11, {7-km}, v7")
    a("v_and_b32 v11, 3, v1"); a("v_lshl_add_u32 v7, v11, 3, v7"); a("v_lshlrev_b32 v7, 9, v7")
    a(f"s_lshr_b32 s37, s3, {2-km}"); a(f"s_and_b32 s39, s3, {(4>>km)-1}"); a("s_lshl_b32 s39, s39, 5"); a("s_add_u32 s37, s37, s39"); a("s_lshl_b32 s37, s37, 9"); a("s_add_u32 s33, s33, s37")
    ffn_ids(a, 24, None); a("s_lshl_b32 s24, s24, 3"); a("s_and_b32 s25, s15, 7"); a("s_add_u32 s24, s24, s25"); a(f"s_mul_i32 s24, s24, {9*CH}")
    a("s_mul_i32 s25, s3, 9216"); a("s_add_u32 s24, s24, s25"); a(f"s_add_u32 s24, s24, {WGU}")
    for i in range(4):
        for t in range(2):
            a(f"v_mov_b32 v{PQ+16*i+8*t+1}, 0"); a(f"v_mov_b32 v{PQ+16*i+8*t+7}, 0")
    for s in range(2):
        for x in (1, 7, 9, 15): a(f"v_mov_b32 v{AO+16*s+x}, 0")
    g = [f"s_add_u32 s26, s26, {Y1}", f"s_add_u32 s27, s27, {Y1}", f"s_add_u32 s30, s30, {Y1}",
          "v_and_b32 v6, 1, v3", f"v_mul_u32_u24 v6, {72*256}, v6", "v_lshl_add_u32 v6, v9, 1, v6",
          "v_lshlrev_b32 v5, 2, v1", "v_cmp_gt_u32 vcc, 32, v1", "s_lshl_b32 s31, s17, 2", "s_add_u32 s31, s31, s3", "v_cndmask_b32 v5, v14, v5, vcc",
          "s_lshl_b32 s36, s16, 4", "s_add_u32 s36, s36, s31", "s_lshl_b32 s36, s36, 7",
          "s_lshl_b32 s29, s13, 20", f"s_add_u32 s29, s29, {hx(FL + 2*131072)}", "s_add_u32 s29, s29, s36",
          "s_cmp_eq_u32 s31, 1\ns_cselect_b64 vcc, -1, 0", "v_cndmask_b32 v166, v14, v5, vcc",
          "s_lshl_b32 s31, s31, 13", "s_lshl_b32 s32, s16, 7", "s_add_u32 s32, s32, s12", "s_add_u32 s31, s31, s32", f"s_add_u32 s31, s31, {SSQ}", f"s_add_u32 s32, s32, {DMU}",
          "s_cmp_eq_u32 s3, 0\ns_cselect_b64 vcc, -1, 0", "v_cndmask_b32 v6, v14, v6, vcc"]
    a.ext(g[:-2]); a("s_cmp_eq_u32 s3, 0"); a("s_cselect_b64 s[40:41], -1, 0"); a("v_cndmask_b32 v6, v14, v6, s[40:41]")
    poll(a, 11, 7, 33, max(0, OPT["presleep"] - 10))
    stamp(a, 5)
    def lds_(i):
        k = KVR + 16 * i
        o = [f"buffer_load_dwordx4 {vr(k)}, v4, {WS}, s20 offen sc1", f"buffer_load_dwordx4 {vr(k+4)}, v4, {WS}, s20 offen offset:1024 sc1",
             f"buffer_load_dwordx4 {vr(k+8)}, v{AD+(i&1)}, {WS}, s20 offen offset:2048 sc1", f"buffer_load_dwordx2 {vr(k+12,2)}, v9, {WS}, s20 offen offset:{2048+384} sc1",
             f"buffer_load_dword v{k+14}, v{AD+2+(i&1)}, {WS}, s20 offen offset:{2048+640} sc1", f"s_add_u32 s20, s20, {KV_P}",
             f"buffer_load_dwordx2 {vr(PL+2*i,2)}, v10, {WS}, s23 offen offset:{256*i} sc1"]
        for t in range(2): o.append(f"buffer_load_dwordx4 {vr(PQ+16*i+8*t+2)}, v4, {WS}, s{21+t} offen offset:{1024*i} sc1")
        o.append(f"buffer_load_dwordx4 {WM(i)}, v252, {WS}, s34 offen offset:{128*i} sc1")
        if i == 3: o.append(f"buffer_load_dwordx2 {WM(4)}, v252, {WS}, s35 offen sc1")
        return o
    nup = OPT.get("kbup", 2)
    for i in range(nup): a.ext(lds_(i))
    late = [o for i in range(nup, 4) for o in lds_(i)]
    E8 = lambda t: ar(112 + 4 * t); EM = lambda t: ar(120 + 4 * t)
    def prep(i):
        k = KVR + 16 * i; A = AO + 16 * (i & 1); o = []; e = o.append
        e(f"v_cvt_pk_bf16_f32 v{A+2}, v{k}, v{k+1}"); e(f"v_cvt_pk_bf16_f32 v{A+3}, v{k+2}, v{k+3}")
        e(f"v_cvt_pk_bf16_f32 v{A+4}, v{k+4}, v{k+5}"); e(f"v_cvt_pk_bf16_f32 v{A+5}, v{k+6}, v{k+7}")
        e(f"v_cvt_pk_bf16_f32 v{k+8}, v{k+8}, v{k+9}"); e(f"v_cvt_pk_bf16_f32 v{k+9}, v{k+10}, v{k+11}")
        e(f"v_cvt_pk_bf16_f32 v{A}, v{k+12}, 0"); e(f"v_cvt_pk_bf16_f32 v{A+6}, 0, v{k+13}")
        e(f"v_cvt_pk_bf16_f32 v{k+10}, v{k+14}, 0"); e(f"v_cvt_pk_bf16_f32 v{k+11}, 0, v{k+14}")
        e(f"v_cndmask_b32 v{A+10}, 0, v{k+8}, s[44:45]"); e(f"v_cndmask_b32 v{A+11}, 0, v{k+9}, s[44:45]")
        e(f"v_cndmask_b32 v{A+12}, v{k+8}, 0, s[44:45]"); e(f"v_cndmask_b32 v{A+13}, v{k+9}, 0, s[44:45]")
        e(f"v_cndmask_b32 v{A+8}, 0, v{k+10}, s[44:45]"); e(f"v_cndmask_b32 v{A+14}, v{k+11}, 0, s[44:45]")
        for t in range(2):
            b = PQ + 16 * i + 8 * t
            e(f"v_mov_b32 v{b}, v{PL+2*i+t}"); e(f"v_mov_b32 v{b+6}, v{PL+2*i+t}")
        return o
    def mm(i):
        A = AO + 16 * (i & 1); o = []
        for t in range(2):
            b = PQ + 16 * i + 8 * t; d = D + 12 * t
            o += [mf(vr(d + 8), vr(A + 8), vr(b), "0"), mf(vr(d + 8), vr(A + 12), vr(b + 4), vr(d + 8))]
        for t in range(2):
            b = PQ + 16 * i + 8 * t; d = D + 12 * t
            o += [mf(vr(d), vr(A), vr(b), "0"), mf(vr(d + 4), vr(A + 4), vr(b + 4), "0")]
        return o
    def fin(i):
        o = []; e = o.append
        for t in range(2):
            d = D + 12 * t; r = 232 + 3 * t
            e(f"v_add_f32 v{r}, {EPS6}, v{d+8}"); e(f"v_add_f32 v{r+1}, {EPS6}, v{d+9}")
        for t in range(2):
            r = 232 + 3 * t
            e(f"v_rcp_f32 v{r}, v{r}"); e(f"v_rcp_f32 v{r+1}, v{r+1}")
        for t in range(2):
            d = D + 12 * t; r = 232 + 3 * t
            for j in range(8): e(f"v_mul_f32 v{d+j}, v{d+j}, v{r+(j>>2)}")
            e(f"v_cndmask_b32 v{r+2}, v{r}, v{r+1}, s[50:51]")
            for m in range(4): e(f"v_cvt_pk_bf16_f32 v{OU+4*t+m}, v{d+2*m}, v{d+2*m+1}")
            for j in range(2): e(f"v_{'fmac' if i & 1 else 'mul'}_f32 v{238+2*t+j}, v{d+10+j}, v{r+2}")
            e((f"ds_write_b128 v8, {vr(OU+4*t)} offset:{(2*i+t)*1024}", "ow"))
            e(mf(E8(t), W8(i), vr(OU + 4 * t), E8(t) if i else "0")); e(mf(EM(t), WM(i), vr(OU + 4 * t), EM(t) if i else "0"))
            if i & 1: e(f"v_cvt_pk_bf16_f32 v{242+2*t+(i>>1)}, v{238+2*t}, v{238+2*t+1}")
        return o
    b_ = prep(0)
    if DBG: b_ += stamp_ops(25)
    for i in range(4):
        b_ += weave(mm(i), prep(i + 1)[:16]) + prep(i + 1)[16:] if i < 3 else mm(i)
        b_ += fin(i)
    for t in range(2): b_.append((f"ds_write_b64 v246, {vr(242+2*t,2)} offset:{t*1024}", "ow"))
    for t in range(2): b_.append(f"v_mfma_f32_16x16x16_bf16 {EM(t)}, {WM(4)}, {vr(242+2*t,2)}, {EM(t)}")
    for t in range(2): b_.append(f"v_mfma_f32_16x16x16_bf16 {E8(t)}, {W8(4)}, {vr(242+2*t,2)}, {E8(t)}")
    raw = []
    for e in range(8): raw += [f"buffer_load_dwordx4 {ar(RAWB+4*e)}, v254, s[56:59], s60 offen{' nt' if OPT.get('ntB', 1) else ''}", "s_add_u32 s60, s60, 9216"]
    b_ = weave(b_, raw, OPT.get("rawB0", 90), OPT.get("rawB1", 200))
    if late: b_ = weave(b_, late, 1, OPT.get("kbl", 60))
    a.ext(b_)
    for t in range(2):
        a(f"v_accvgpr_read_b32 v{232+2*t}, a{120+4*t}"); a(f"v_accvgpr_read_b32 v{233+2*t}, a{121+4*t}")
    for t in range(2):
        a(f"ds_write_b128 v253, {E8(t)} offset:{t*1024}", "ow")
        a(f"v_add_f32 v{232+2*t}, v{232+2*t}, v{233+2*t}"); a(f"ds_write_b32 v255, v{232+2*t} offset:{t*256}", "ow")
    a("WAITTAG ow"); a("s_barrier")
    stamp(a, 6)
    OB = 16; NB = 12; AC = 64; U = 80; P8 = 104; PM = 168
    rd = lambda i: f"ds_read_b128 {vr(OB+4*(i%NB))}, v247 offset:{i*1024}"
    for i in range(8): a(rd(i))
    f = [f"v_add_u32 v8, {T8}, v4", f"v_lshlrev_b32 v10, 4, v2", f"v_add_u32 v10, {DM}, v10"]
    for t in range(2): f.append(f"ds_read_b128 {vr(PM+4*t)}, v10 offset:{t*256}")
    for t in range(2):
        for w in range(4): f.append(f"ds_read_b128 {vr(P8+16*t+4*w)}, v8 offset:{w*2048+t*1024}")
    for t in range(2):
        for m in range(4): f += [f"v_lshlrev_b32 v{U+12*t+2*m}, 16, v{RS+4*t+m}", f"v_and_b32 v{U+12*t+2*m+1}, 0xffff0000, v{RS+4*t+m}"]
        for m in range(2): f += [f"v_lshlrev_b32 v{U+12*t+8+2*m}, 16, v{R8+2*t+m}", f"v_and_b32 v{U+12*t+8+2*m+1}, 0xffff0000, v{R8+2*t+m}"]
    for t in range(2): f += [f"v_add_f32 v{PM+4*t}, v{PM+4*t}, v{PM+4*t+1}", f"v_add_f32 v{PM+4*t+2}, v{PM+4*t+2}, v{PM+4*t+3}"]
    for t in range(2): f.append(f"v_add_f32 v{PM+4*t}, v{PM+4*t}, v{PM+4*t+2}")
    for t in range(2):
        for j in range(12): f.append(f"v_fma_f32 v{U+12*t+j}, v{U+12*t+j}, v{SD+t}, -v{PM+4*t}")
    for w in range(4):
        for t in range(2):
            for j in range(4): f.append(f"v_add_f32 v{U+12*t+8+j}, v{U+12*t+8+j}, v{P8+16*t+4*w+j}")
    YO = 136; SQ = 148
    h = []
    for t in range(2):
        for m in range(2): h.append(f"v_cvt_pk_bf16_f32 v{YO+8+2*t+m}, v{U+12*t+8+2*m}, v{U+12*t+8+2*m+1}")
    h.append(f"v_cndmask_b32 v{PM}, v{PM}, v{PM+4}, s[50:51]")
    for t in range(2): h.append(f"v_mul_f32 v{SQ+t}, v{U+12*t+8}, v{U+12*t+8}")
    h += [f"v_permlane16_swap_b32 v{YO+8}, v{YO+10}", f"v_permlane16_swap_b32 v{YO+9}, v{YO+11}"]
    for j in range(1, 4):
        for t in range(2): h.append(f"v_fmac_f32 v{SQ+t}, v{U+12*t+8+j}, v{U+12*t+8+j}")
    h += [f"buffer_store_dwordx4 {vr(YO+8)}, v6, {WS}, s30 offen sc1", f"buffer_store_dword v{PM}, v166, {WS}, s32 offen sc1"]
    for t in range(2): h.append(f"v_cndmask_b32 v{SQ+t}, 0, v{SQ+t}, s[40:41]")
    slots = []
    for kp in range(9):
        cnt = 0
        for t in range(2):
            for n in range(2):
                for kk in range(2):
                    ks = 2 * kp + kk; d = vr(AC + 8 * t + 4 * n)
                    post = []
                    if cnt % 2 == 1 and 4 * kp + 8 + cnt // 2 < 36: post = [rd(4 * kp + 8 + cnt // 2)]
                    pre = ["NEED " + ", ".join(vr(OB + 4 * ((4 * kp + x) % NB)) for x in range(4))] if cnt == 0 else []
                    slots.append([pre, mf(d, WOA(n, ks), vr(OB + 4 * ((2 * ks + t) % NB)), d if ks else "0"), post]); cnt += 1
    hoist_pre(slots)
    nd = OPT.get("kbd", 18)
    dm = bundles(dma_chunk(0, "w0") + dma_chunk(1, "w1"))
    G.dmrest = [o for b in dm[nd:] for o in b]
    if nd: vspread(slots, [o for b in dm[:nd] for o in b], 1, 70)
    normalize(slots)
    lf = pack(slots, f + h, start=0)
    print("kb est", est_cycles(slots, 0, len(slots)), "left", lf)
    a.ext(flat(slots))
    for t in range(2):
        for j in range(8): a(f"v_add_f32 v{U+12*t+j}, v{U+12*t+j}, v{AC+8*t+j}")
        for m in range(4): a(f"v_cvt_pk_bf16_f32 v{YO+4*t+m}, v{U+12*t+2*m}, v{U+12*t+2*m+1}")
        a(f"buffer_store_dwordx4 {vr(YO+4*t)}, v4, {WS}, s{26+t} offen sc1")
    for j in range(8):
        for t in range(2): a(f"v_fmac_f32 v{SQ+t}, v{U+12*t+j}, v{U+12*t+j}")
    a(f"v_permlane16_swap_b32 v{SQ}, v{SQ+1}"); a(f"v_add_f32 v{SQ}, v{SQ}, v{SQ+1}")
    a(f"v_mov_b32 v{SQ+1}, v{SQ}"); a(f"v_permlane32_swap_b32 v{SQ}, v{SQ+1}"); a(f"v_add_f32 v{SQ}, v{SQ}, v{SQ+1}")
    a(f"buffer_store_dword v{SQ}, v5, {WS}, s31 offen sc1", "kbst")
    stamp(a, 7)

def dma_chunk(slot, tag, sreg=24, va=4):
    o = []
    for j in range(9):
        if j % 4 == 0: o.append(f"s_add_u32 m0, s25, {slot*CH + j*1024}")
        o.append((f"buffer_load_dwordx4 v{va}, {WS}, s{sreg} offen offset:{(j%4)*1024} sc1 lds", tag))
        if j % 4 == 3: o.append(f"s_add_u32 s{sreg}, s{sreg}, 4096")
    o.append(f"s_add_u32 s{sreg}, s{sreg}, {CH - 8192}")
    return o

def m_ffn(a):
    a("Lffn:")
    ffn_ids(a, 18, 16)
    a("s_and_b32 s17, s15, 7")
    a("s_lshl_b32 s19, s16, 2"); a("s_add_u32 s19, s19, s3")
    a(f"s_mul_i32 s22, s19, {4*72*256}"); a("s_add_u32 s22, s22, s12"); a(f"s_add_u32 s22, s22, {Y1}"); a(f"s_add_u32 s21, s22, {72*256}")
    a("s_lshl_b32 s20, s17, 11") if OPT.get("rot1", 1) else a("s_mov_b32 s20, 0")
    a("s_add_u32 s20, s20, s22"); a(f"v_add_u32 v223, {72*256}, v4")
    for s in range(4): a(f"v_add_u32 v{5+s}, {s*CH}, v4")
    a("v_and_b32 v9, 1, v3"); a("v_mul_u32_u24 v9, 147456, v9"); a("v_lshrrev_b32 v10, 1, v3"); a("v_lshl_add_u32 v9, v10, 8, v9"); a("v_lshl_add_u32 v9, v2, 4, v9")
    a(f"s_mul_i32 s26, s19, {4*147456}"); a(f"s_mul_i32 s27, s18, {CH}"); a("s_add_u32 s26, s26, s27"); a("s_lshl_b32 s27, s17, 9"); a("s_add_u32 s26, s26, s27")
    a("s_add_u32 s26, s26, s12"); a(f"s_add_u32 s26, s26, {HH}"); a(f"s_add_u32 s27, s26, {2*147456}")
    SQ = FT
    a("v_lshlrev_b32 v10, 15, v3"); a("v_lshl_add_u32 v10, v2, 2, v10")
    a("s_lshl_b32 s28, s19, 8"); a("s_add_u32 s28, s28, s12"); a(f"s_add_u32 s28, s28, {SSQ}")
    flag_base(a, 30, 2); a("s_lshl_b32 s31, s19, 12"); a("s_add_u32 s30, s30, s31")
    a("v_and_b32 v16, 31, v1"); a("v_lshlrev_b32 v16, 7, v16")
    a("s_lshl_b32 s38, s16, 2"); a("s_add_u32 s38, s38, s18"); a("s_lshl_b32 s38, s38, 12")
    flag_base(a, 40, 3); a("s_add_u32 s40, s40, s38")
    a("s_lshr_b32 s38, s17, 2"); a("s_lshl_b32 s38, s38, 1"); a("s_lshr_b32 s39, s3, 1"); a("s_add_u32 s38, s38, s39"); a("s_lshl_b32 s38, s38, 7"); a("s_add_u32 s41, s40, s38")
    a("s_lshl_b32 s38, s17, 2"); a("s_add_u32 s38, s38, s3"); a("s_lshl_b32 s38, s38, 7"); a("s_add_u32 s40, s40, s38")
    a("s_and_b32 s42, s17, 3")
    a("s_lshl_b32 s38, s18, 2"); a("s_add_u32 s38, s38, s42"); a(f"s_mul_i32 s44, s38, {9*CH}"); a("s_add_u32 s44, s44, s25"); a(f"s_add_u32 s44, s44, {WD}")
    a("s_lshl_b32 s43, s16, 3"); a("s_and_b32 s39, s17, 4"); a("s_add_u32 s43, s43, s39"); a("s_add_u32 s43, s43, s3")
    flag_base(a, 51, 6); a("s_lshl_b32 s38, s38, 6"); a("s_add_u32 s38, s38, s43"); a("s_lshl_b32 s38, s38, 7"); a("s_add_u32 s51, s51, s38")
    a(f"s_mul_i32 s46, s43, {2*147456}"); a(f"s_mul_i32 s47, s18, {CH}"); a("s_add_u32 s46, s46, s47"); a("s_add_u32 s46, s46, s12"); a(f"s_add_u32 s46, s46, {HH}"); a("s_add_u32 s47, s46, 147456")
    a(f"s_mul_i32 s48, s43, {2*72*256}"); a(f"s_mul_i32 s49, s18, {ACT}"); a("s_add_u32 s48, s48, s49")
    a("s_add_u32 s48, s48, s12"); a(f"s_add_u32 s48, s48, {PP}"); a("s_lshl_b32 s49, s42, 9"); a("s_add_u32 s50, s48, s49"); a("s_add_u32 s50, s50, 16384")
    a("s_lshl_b32 s49, s42, 12"); a("s_add_u32 s48, s48, s49"); a(f"s_add_u32 s49, s48, {72*256}")
    flag_base(a, 55, 7, 1); a("s_lshl_b32 s54, s2, 7"); a("s_add_u32 s54, s54, s55"); a("s_lshl_b32 s38, s3, 13"); a("s_add_u32 s55, s55, s38")
    a(f"s_mul_i32 s45, s7, {WQ_P}"); a("s_add_u32 s45, s45, s25")
    a("WAITALL"); a(publish(29))
    stamp(a, 8)
    a.ext(G.dmrest + dma_chunk(2, "w2"))
    a("s_barrier")
    if OPT.get("w3e", 0): a.ext(dma_chunk(3, "w3"))
    batchb_perm(a)
    wb = lambda i: vr(FWB + 4 * (i % FNB))
    HS = lambda i: 28 + 16 * (i % 6)
    groups = []; gstart = {}
    hq = []
    for th in range(2):
        gstart["A%d" % th] = len(groups)
        for c in range(3): hq.append((c, th, 3 * th + c))
        for kp in range(9):
            for c in range(3):
                for f in range(2):
                    groups.append((c, [kp * 4 + f * 2, kp * 4 + f * 2 + 1], None,
                                   [(HS(3 * th + c) + 8 * f + 4 * t, big(8 * kp + 2 * th + t), big(8 * kp + 4 + 2 * th + t), kp == 0) for t in range(2)]))
    for c in range(3, 9):
        gstart[c] = len(groups)
        hq += [(c, 0, 2 * c), (c, 1, 2 * c + 1)]
        for kp in range(9):
            for f in range(2):
                groups.append((c, [kp * 4 + f * 2, kp * 4 + f * 2 + 1], None,
                               [(HS(2 * c + (t >> 1)) + 8 * f + 4 * (t & 1), big(8 * kp + t), big(8 * kp + 4 + t), kp == 0) for t in range(4)]))
    accs = list(range(28, 76, 4)) + list(range(196, 220, 4))
    acc = lambda nt, t: accs[nt * 2 + t]
    for c in range(7):
        gstart[9 + c] = len(groups)
        for k2 in range(2):
            for nt in range(9):
                groups.append((9 + c, [k2 * 18 + nt * 2, k2 * 18 + nt * 2 + 1], nt,
                               [(acc(nt, t), big(8 * c + 4 * k2 + t), big(8 * c + 4 * k2 + 2 + t), c == 0 and k2 == 0) for t in range(2)]))
    for g in range(36):
        if g % 18 == 0: gstart[16 + g // 18] = len(groups)
        nt, k4 = g // 4, g % 4
        groups.append((16 + g // 18, [(g % 18) * 2, (g % 18) * 2 + 1], nt,
                       [(acc(nt, t), big(56 + 4 * k4 + t), big(56 + 4 * k4 + 2 + t), False) for t in range(2)]))
    frs = [(g[0], fi, g[2], gi) for gi, g in enumerate(groups) for fi in g[1]]
    def rd(i):
        c, fi, nt, gi = frs[i]; o = []
        if c >= 3 and i == 2 * gstart[c]:
            o += [f"WAITTAG w{c}", "s_barrier"]
            if c > 9:
                d = CH if c % 4 else -3 * CH
                o += [f"v_add_u32 v10, {hx(d)}, v10", f"v_add_u32 v11, {hx(d)}, v11"]
        ad = 5 + c % 4 if c < 9 else (11 if nt == 8 else 10)
        o.append(f"ds_read_b128 {wb(i)}, v{ad} offset:{fi*1024}")
        return o
    RD = 8
    poll(a, 17, 16, 30, OPT.get("slp3", 4))
    stamp(a, 9)
    xl = []
    for th in range(2):
        for kp in range(9):
            o = [f"buffer_load_dwordx4 {big(8*kp+4*kk+2*th+t)}, {'v223' if t else 'v4'}, {WS}, s20 offen offset:{kk*1024} sc1" for t in range(2) for kk in range(2)]
            if OPT.get("rot1", 1):
                o += ["s_add_u32 s20, s20, 2048", "s_cmp_eq_u32 s20, s21\ns_cselect_b32 s20, s22, s20"]
                if th == 0 and kp == 8: o += [f"s_add_u32 s{r}, s{r}, {2*72*256}" for r in (20, 21, 22)]
            else:
                o = [x.replace(f"offset:{k*1024} ", f"offset:{k*1024 + (kp&1)*2048} ") for x, k in zip(o, (0, 1, 0, 1))]
                if kp & 1: o.append("s_add_u32 s20, s20, 4096")
                if kp == 8: o.append(f"s_add_u32 s20, s20, {2*72*256 - 4*4096}")
            xl.append(o)
    n0 = OPT["x0"]
    a.ext(xl[0]); a("s_barrier")
    for i in range(RD): a.ext(rd(i))
    tch = lambda v, sr, sink=215: (f"buffer_load_dword v{sink}, v{v}, {WS}, s{sr} offen sc1", "touch")
    TX = OPT.get("tx", 1)
    for o in xl[1:n0]: a.ext(o)
    xl = [x for o in xl[n0:] for x in o]
    sq = []
    for i in range(4):
        for t in range(4): sq.append(f"buffer_load_dword v{SQ+4*t+i}, v10, {WS}, s28 offen offset:{64*t} sc1")
        sq.append("s_add_u32 s28, s28, 8192")
    st = []
    for t in range(4): st += [f"v_add_f32 v{SQ+4*t}, v{SQ+4*t}, v{SQ+4*t+1}", f"v_add_f32 v{SQ+4*t+2}, v{SQ+4*t+2}, v{SQ+4*t+3}"]
    for t in range(4): st.append(f"v_add_f32 v{SQ+4*t}, v{SQ+4*t}, v{SQ+4*t+2}")
    for sw in ("16", "32"):
        for t in range(4): st.append(f"v_mov_b32 v{SQ+4*t+1}, v{SQ+4*t}")
        for t in range(4): st.append(f"v_permlane{sw}_swap_b32 v{SQ+4*t}, v{SQ+4*t+1}")
        for t in range(4): st.append(f"v_add_f32 v{SQ+4*t}, v{SQ+4*t}, v{SQ+4*t+1}")
    st.append(f"v_mov_b32 v{SQ+1}, {hx(f2u(1e-5))}")
    for t in range(4): st.append(f"v_fmamk_f32 v{CV+t}, v{SQ+4*t}, {hx(f2u(1/576))}, v{SQ+1}")
    for t in range(4): st.append(f"v_rsq_f32 v{SQ+4*t}, v{CV+t}")
    for t in range(4): st.append(f"v_rcp_f32 v{SQ+4*t+2}, v{CV+t}")
    for t in range(4): st.append(f"v_mul_f32 v{C1+t}, {hx(f2u(GC1))}, v{SQ+4*t}")
    for t in range(4): st.append(f"v_mul_f32 v{SQ+4*t}, {hx(f2u(GC3))}, v{SQ+4*t}")
    for t in range(4): st.append(f"v_mul_f32 v{C3+t}, v{SQ+4*t}, v{SQ+4*t+2}")
    T0 = SQ + 16
    st += [f"v_and_b32 v{T0}, 3, v2", f"v_add_u32 v{T0+1}, v{T0}, v3", f"v_lshrrev_b32 v{T0+2}, 2, v2", f"v_lshl_add_u32 v{T0+1}, v{T0+1}, 2, v{T0+2}", f"v_and_b32 v{T0+1}, 15, v{T0+1}",
           f"v_lshl_add_u32 v{T0+1}, v{T0}, 4, v{T0+1}", f"v_lshlrev_b32 v10, 4, v{T0+1}", f"v_add_u32 v10, {CH}, v10",
           f"v_lshrrev_b32 v{T0}, 3, v2", f"v_lshl_add_u32 v{T0}, v3, 1, v{T0}", f"v_and_b32 v{T0+1}, 2, v2", f"v_lshl_add_u32 v{T0}, v{T0+1}, 1, v{T0}", f"v_and_b32 v{T0}, 7, v{T0}",
           f"v_and_b32 v{T0+1}, 7, v2", f"v_lshl_add_u32 v{T0}, v{T0+1}, 3, v{T0}", f"v_lshlrev_b32 v11, 4, v{T0}", f"v_add_u32 v11, {CH}, v11"]
    slots = []; sstart = []; seenb = set()
    nrd = RD
    for gi, (c, fr, nt, tl) in enumerate(groups):
        sstart.append(len(slots))
        n = 2 * len(tl)
        for ti, (d, b0, b1, first) in enumerate(tl):
            for kk in range(2):
                k = 2 * ti + kk
                pre = []
                if k == 0:
                    if not OPT.get("w2", 1): pre = [f"NEED {wb(2*gi)}, {wb(2*gi+1)}"]
                    elif gi % 2 == 0: pre = [f"NEED {wb(2*gi)}, {wb(2*gi+1)}, {wb(2*gi+2)}, {wb(2*gi+3)}"]
                if k == 0 and gi % 2 == 0:
                    newb = [b for g2 in groups[gi:gi+2] for x in g2[3] for b in x[1:3] if (b, c >= 9) not in seenb]
                    if newb:
                        seenb.update((b, c >= 9) for b in newb); pre[0] += ", " + ", ".join(newb)
                post = []
                if k in ((0, 2) if n == 4 else (1, 5)) and nrd < len(frs):
                    post = rd(nrd); nrd += 1
                slots.append([pre, mf(vr(d), wb(2 * gi + kk), (b0, b1)[kk], "0" if (first and kk == 0) else vr(d)), post])
    start = {k: sstart[v] for k, v in gstart.items()}
    start[18] = len(slots)
    hoist_pre(slots)
    def hl(c):
        o = []
        for pp in range(4):
            for t in range(2): o.append(f"buffer_load_dwordx4 {big((c*4+pp)*2+t)}, v4, {WS}, s{46+t} offen offset:{pp*1024} sc1")
        return o + ["s_add_u32 s46, s46, 4096", "s_add_u32 s47, s47, 4096"]
    def gel(u):
        c, th, hs = hq[u]; o = HS(hs); f = []
        for t in range(2):
            T = 2 * th + t
            g = [o + 4 * t + i for i in range(4)]; uu = [o + 8 + 4 * t + i for i in range(4)]
            x = [FT + 8 * t + i for i in range(4)]; m = [FT + 8 * t + 4 + i for i in range(4)]
            h = FH + 4 * (u & 1)
            for i in range(4): f.append(f"v_mul_f32 v{x[i]}, v{g[i]}, v{g[i]}")
            for i in range(4): f.append(f"v_fma_f32 v{x[i]}, v{x[i]}, v{C3+T}, v{C1+T}")
            for i in range(4): f.append(f"v_mul_f32 v{x[i]}, v{x[i]}, v{g[i]}")
            for i in range(4):
                f.append(f"v_exp_f32 v{x[i]}, v{x[i]}"); f.append(f"v_mul_f32 v{m[i]}, v{g[i]}, v{uu[i]}")
            for i in range(4): f.append(f"v_fma_f32 v{x[i]}, v{x[i]}, v{CV+T}, v{CV+T}")
            for i in range(4): f.append(f"v_rcp_f32 v{x[i]}, v{x[i]}")
            for i in range(4): f.append(f"v_mul_f32 v{m[i]}, v{m[i]}, v{x[i]}")
            f.append(f"v_cvt_pk_bf16_f32 v{h+2*t}, v{m[0]}, v{m[1]}"); f.append(f"v_cvt_pk_bf16_f32 v{h+2*t+1}, v{m[2]}, v{m[3]}")
        tail = [f"v_permlane16_swap_b32 v{h}, v{h+2}", f"v_permlane16_swap_b32 v{h+1}, v{h+3}",
                (f"buffer_store_dwordx4 {vr(h)}, v9, {WS}, s{26+th} offen sc1", f"h{u}"), f"s_add_u32 s{26+th}, s{26+th}, 4096"]
        return f, tail
    def gels(us):
        out = []; pend = []
        for u in us:
            f, tail = gel(u)
            out += f[:3] + pend + f[3:]; pend = tail
        return out + pend
    A0, A1 = start["A0"], start["A1"]
    bst = [(f"buffer_store_dwordx4 {vr(BO+4*(i&3))}, v{BA+i}, {WS}, 0 offen sc1", "phantom") for i in range(8)]
    BB = OPT.get("bb", 1)
    if OPT.get("vsa", 1):
        X_ = [(0, 24 * (n0 + i // 4), b) for i, b in enumerate(bundles(xl))]
        W_ = [] if OPT.get("w3e", 0) else [(OPT.get("w3r", 100) + 24 * i, OPT.get("w3r", 100) + 24 * i + OPT.get("w3d", 70), b) for i, b in enumerate(bundles(dma_chunk(3, "w3")))]
        print("A slack", vsched(slots, [X_, W_], 2, OPT.get("RA", 52) / 10))
        vspread(slots, sq, OPT.get('sq0', 0), OPT.get('sq1', 80))
    else:
        vspread(slots, xl, 0, 432 - OPT.get("xlead", 130))
        vspread(slots, sq, OPT.get('sq0', 0), OPT.get('sq1', 80))
        if not OPT.get("w3e", 0): vspread(slots, dma_chunk(3, "w3"), A1 + OPT.get("w3a", -30), A1 + OPT.get("w3b", 110))
    if OPT.get("bbs", 1):
        ops = []
        for i in range(8):
            ops.append((bst[i][0], "bb"))
            if i < 4: ops.append(f"ds_read_b128 {vr(BO+4*i)}, v220 offset:{i*1024}")
        vspread(slots, ops, start[3] + OPT.get("bb0", 0), start[3] + OPT.get("bb1", 190))
        slots[start[5] - 33][2].append("WAITTAG bb")
    else:
        b0 = start[3] + OPT.get("bb0", 0)
        slots[b0][2] += ["s_cmp_eq_u32 s13, 0\ns_cbranch_scc0 Lnb0"] + bst[:4] + ["s_nop 1"] + [(f"ds_read_b128 {vr(BO+4*i)}, v220 offset:{i*1024}", "phantom") for i in range(4)] + ["Lnb0:"]
        slots[b0 + OPT.get("bbd", 44)][2] += ["s_cmp_eq_u32 s13, 0\ns_cbranch_scc0 Lnb1"] + bst[4:] + ["Lnb1:"]
    PK = 1
    slots[start[3] + 20][2] += ["s_barrier"]
    slots[start[5] - 28][2] += ["s_or_b32 s38, s3, s13\ns_cselect_b64 vcc, 0, -1", "v_lshlrev_b32 v221, 7, v1"]
    slots[start[5] - 26][2] += ["v_cndmask_b32 v220, v14, v13, vcc", publish(54, 220)]
    slots[start[5] + OPT.get("bp0", 60)][2] += [poll_issue(220, 221, 55)]
    slots[start[5] + 108][2] += poll_check(220, 221, 55)
    vspread(slots, dma_chunk(0, "w4"), start[3] - 14, start[3] + 40)
    vspread(slots, dma_chunk(1, "w5"), start[3] + 50, start[3] + 112)
    VS = OPT.get("vs", 1)
    assert VS
    vspread(slots, dma_chunk(3, "w7") + dma_chunk(0, "w8"), start[6] - 28, start[6] + 112)
    for c in range(4, 5):
        cn = c + 2
        ops = dma_chunk(cn % 4, f"w{cn}", 24 if cn < 9 else 44)
        if c < 9: vspread(slots, ops, start[c] - OPT.get("d1a", 28), start[c] + OPT.get("d1b", 108))
        else: vspread(slots, ops, start[c] - 14, start[c] + OPT.get("dw", 44))
    slots[start[7] + 20][2] += ["WAITTAG h9", publish(40), "s_add_u32 s40, s40, 131072"]
    slots[start[9] + 30][2] += ["WAITTAG h13", publish(40), "s_add_u32 s40, s40, 131072"]
    slots[start[7] + 4][2] += ["v_and_b32 v7, 7, v1", "v_lshlrev_b32 v7, 9, v7"]
    slots[start[7] + 120][2] += [poll_issue(6, 7, 41)]
    slots[start[8] + 16][2] += poll_check(6, 7, 41) + ["s_add_u32 s41, s41, 131072"]
    if VS:
        l2 = start[10] + OPT.get("l2", 40)
        slots[l2][2] += [poll_issue(6, 7, 41)]
        slots[l2 + 40][2] += poll_check(6, 7, 41) + ["s_add_u32 s41, s41, 131072"]
        l3 = start[12] + OPT.get("l3", 40)
        slots[l3][2] += ["WAITTAG h17", publish(40)]
        slots[l3 + OPT.get("l3a", 66)][2] += [poll_issue(6, 7, 41)]
        l3c = l3 + OPT.get("l3b", 100)
        slots[l3c][2] += poll_check(6, 7, 41)
        slots[start[7] + 2][2] += ["s_barrier"]
        vspread(slots, dma_chunk(1, "w9", 44) + dma_chunk(2, "w10", 44), start[7] - 28, start[7] + 140)
        x8 = OPT.get("x8", 0)
        if x8: slots[start[8] + 2][2] += ["s_barrier"]
        W = []
        for cn in range(11, 18):
            rel = start[cn - 2] - (30 if cn == 11 else 15)
            if x8 and cn == 11: rel = start[8] + 3
            W += [(rel, start[cn] - 16, b) for b in bundles(dma_chunk(cn % 4, f"w{cn}", 44))]
        H = []
        for c in range(9):
            rel = start[8] + max(17, 16 * (c + 1)) if c < 5 else (l2 + 41 if c < 7 else l3c + 1)
            H += [(rel, start[min(9 + c, 16)] + (36 * (i >> 2) if c < 7 else 0), b) for i, b in enumerate(bundles(hl(c)))]
        sl, tend = vsched(slots, [W, H], start[8] + 4, OPT.get("R", 50) / 10)
        print("vsched min slack", sl, "end", tend - start[16])
        wq0 = max(tend + 4, start[16] - 14)
    else:
        nh8 = OPT.get("nh8", 5)
        step = (144 - 20) // nh8
        for c in range(nh8): vspread(slots, hl(c), start[8] + 17 + step * c, start[8] + 17 + step * (c + 1))
        rem = [o for c in range(nh8, 5) for o in hl(c)]
        if rem: vspread(slots, rem, start[9] + 28, start[10] + 56)
        slots[start[10] + 57][2] += [poll_issue(6, 7, 41)]
        slots[start[11] + 27][2] += poll_check(6, 7, 41) + ["s_add_u32 s41, s41, 131072"]
        vspread(slots, hl(5) + hl(6), start[11] + 28, start[13] + 20)
        G.fill = lambda: None
        l3 = start[12] + OPT.get("l3", 40)
        slots[l3][2] += ["WAITTAG h17", publish(40)]
        slots[l3 + OPT.get("l3a", 66)][2] += [poll_issue(6, 7, 41)]
        slots[l3 + OPT.get("l3b", 100)][2] += poll_check(6, 7, 41)
        vspread(slots, hl(7) + hl(8), l3 + OPT.get("l3b", 100) + 1, start[15] + OPT.get("l3c", 16))
        wq0 = start[16] - 14
    if OPT.get("wqpf", 1):
        slots[start[15] + 2][2] += ["s_cmp_eq_u32 s13, 0\ns_cselect_b64 vcc, -1, 0", "v_cndmask_b32 v222, v14, v4, vcc"]
        vspread(slots, dma_chunk(2, "wq", 45, 222), wq0, start[17] - 15)
        if OPT.get("wqpf", 1) == 1: vspread(slots, dma_chunk(3, "wq", 45, 222), start[17] - 14, start[17] + OPT.get("wqe", 30))
    slots[start[16]][2] += ["v_and_b32 v5, 1, v3", f"v_mul_u32_u24 v5, {72*256}, v5", "v_lshrrev_b32 v6, 1, v3", "v_lshl_add_u32 v5, v6, 8, v5", "v_lshl_add_u32 v5, v2, 4, v5"]
    normalize(slots)
    pack(slots, st, start=OPT.get("st0", 110), end=A1)
    if PK:
        lf = [pack(slots, gels([0, 1, 2]), start=A1 + 4, end=start[3])]
        for c in range(3, 9): lf.append(pack(slots, gels([2 * c - 3, 2 * c - 2]), start=start[c] + 2, end=start[c + 1]))
        lf.append(pack(slots, gels([15, 16, 17]), start=start[9] + 4, end=start[12] - OPT.get("p2end", 10)))
        print("left", lf)
    else:
        left = place(slots, gels([0, 1, 2]), 3, start=A1 + 4, end=start[3])
        if left: print("gelu left A", left)
        for c in range(3, 9):
            left = place(slots, gels([2 * c - 3, 2 * c - 2]), 2 if c not in (3, 8) else 3, start=start[c] + 2, end=start[c + 1])
            if left: print("gelu left", c, left)
        left = place(slots, gels([15, 16, 17]), OPT.get("p2cap", 3), start=start[9] + 4, end=start[12] - OPT.get("p2end", 10))
        if left: print("gelu left p2", left)
    O = 96
    def epi(P):
        f = []
        for t in range(2):
            o = O + 8 * P + 4 * t
            for m in range(4): f.append(f"v_cvt_pk_bf16_f32 v{o+m}, v{acc(2*P+(m>>1),t)+2*(m&1)}, v{acc(2*P+(m>>1),t)+2*(m&1)+1}")
            f.append(f"buffer_store_dwordx4 {vr(o)}, v4, {WS}, s{48+t} offen offset:{P*1024} sc1")
        return f
    o = O + 32
    f = [f"v_cvt_pk_bf16_f32 v{o+2*t+m}, v{acc(8,t)+2*m}, v{acc(8,t)+2*m+1}" for t in range(2) for m in range(2)]
    f += [f"v_permlane16_swap_b32 v{o}, v{o+2}", f"v_permlane16_swap_b32 v{o+1}, v{o+3}", f"buffer_store_dwordx4 {vr(o)}, v5, {WS}, s50 offen sc1"]
    last = f
    for P in range(4): pack(slots, epi(P), front=True, start=start[16] + 32 * (P + 1) + 5, end=min(start[18], start[16] + 32 * (P + 1) + 24))
    if DBG:
        for c, i in (("A1", 22), (3, 10), (6, 11), (9, 12), (12, 13), (15, 14)):
            slots[start[c]][0][:0] = stamp_ops(i)
        if "xs" in OPT:
            for n, i in enumerate((27, 28, 29, 30)): slots[OPT["xs"] + n * OPT["xd"]][0][:0] = stamp_ops(i)
    ks_ = ["A0", "A1"] + list(range(3, 19))
    print("est", [est_cycles(slots, start[x], start[y]) for x, y in zip(ks_[:-1], ks_[1:])])
    fl = flat(slots)
    ab = OPT.get("abl", 0)
    tx = lambda x: x[0] if isinstance(x, tuple) else x
    if ab & 1: fl = [("s_nop 0", x[1]) if (tx(x).endswith(" lds")) else x for x in fl]
    if ab & 2: fl = [x for x in fl if not (tx(x).startswith("buffer_load_dwordx4") and not tx(x).endswith(" lds"))]
    if ab & 4: fl = [x for x in fl if tx(x) != "s_barrier"]
    if ab & 8: fl = [x for x in fl if not tx(x).startswith("ds_read")]
    if ab & 16: fl = [x for x in fl if not tx(x).startswith(("v_mul_f32", "v_fma_f32", "v_exp", "v_rcp", "v_cvt_pk", "v_permlane"))]
    if ab & 32: fl = [("s_nop 0", x[1]) if (isinstance(x, tuple) and tx(x).startswith("buffer_store_dwordx4")) else x for x in fl]
    if ab & 64:
        o = []; n = 0
        for x in fl:
            if tx(x).startswith("ds_read") and (", v10 " in tx(x) or ", v11 " in tx(x)):
                n += 1
                if n & 1: continue
            o.append(x)
        fl = o
    a.ext(fl)
    stamp(a, 15)
    a.ext(last)
    a("s_barrier")


def m_kd(a):
    a("s_lshl_b32 s19, s16, 1"); a("s_lshr_b32 s17, s17, 2"); a("s_add_u32 s17, s17, s19"); a("s_lshl_b32 s17, s17, 2"); a("s_add_u32 s17, s17, s18"); a("s_lshl_b32 s17, s17, 2"); a("s_add_u32 s17, s17, s42")
    tokgroup_addr(a, 17)
    L = 132; T = 80
    a("v_add_u32 v8, 4096, v5")
    a(f"s_add_u32 s24, s12, {Y1}")
    for s in range(4): a(f"s_add_u32 s{25+s}, s12, {PP + s*ACT}")
    a(f"s_add_u32 s29, s12, {ST}"); a(f"s_add_u32 s30, s12, {DMU}"); a("v_lshrrev_b32 v9, 2, v7")
    flag_base(a, 31, 6); a("s_lshr_b32 s32, s17, 2"); a("s_lshl_b32 s32, s32, 7"); a("s_add_u32 s31, s31, s32"); a("v_lshlrev_b32 v76, 13, v2")
    flag_base(a, 33, 0, 1); a("s_lshl_b32 s32, s17, 2"); a("s_add_u32 s32, s32, s3"); a("s_lshl_b32 s32, s32, 7"); a("s_add_u32 s33, s33, s32")
    WK = OPT.get("wokd", 1)
    if WK: wo_setup(a)
    a("WAITALL"); a(publish(51))
    stamp(a, 16)
    if OPT.get("ct", 1): code_touch(a, "Lkd_w3", "Lcode_end", 78, 79)
    a("s_cmp_eq_u32 s3, 3"); a("s_cbranch_scc1 Lkd_w3")
    ld = lambda s, i: f"buffer_load_dwordx4 {vr(L+12*s+4*i)}, {'v8' if i == 2 else 'v5'}, {WS}, s{24+s} offen offset:{2048*(i&1)} sc1"
    for i in range(3): a(ld(0, i))
    a(f"buffer_load_dword v10, v7, {WS}, s29 offen sc1"); a(f"buffer_load_dword v11, v9, {WS}, s30 offen sc1")
    unpack(a, T, L, 12)
    a("v_add_f32 v10, v10, v11")
    poll(a, 77, 76, 31, OPT.get("slp4", 0))
    stamp(a, 17)
    for s in range(1, 5):
        for i in range(3): a(ld(s, i))
    sm = []
    for s in range(1, 5):
        for i in range(12):
            sm += [f"v_lshlrev_b32 v76, 16, v{L+12*s+i}", f"v_and_b32 v77, 0xffff0000, v{L+12*s+i}",
                   f"v_add_f32 v{T+2*i}, v{T+2*i}, v76", f"v_add_f32 v{T+2*i+1}, v{T+2*i+1}, v77"]
    a.ext(weave(sm, wo_first(222), OPT.get("wok0", 1), OPT.get("wok1", 190)) if WK else sm)
    stamp(a, 18)
    a("s_cmp_eq_u32 s13, 1"); a("s_cbranch_scc1 Lfinal")
    ln_stats(a, T, 104, LNS)
    stamp(a, 26)
    a(f"s_add_u32 s22, s12, {LBS+XN}"); a(f"s_add_u32 s23, s12, {LBS+ST}")
    ln_write(a, T, 104, L, 5, 22, 10, 6, 23)
    a("WAITALL"); a(publish(33))
    stamp(a, 19)
    a("s_branch Lnext")
    a("Lkd_w3:")
    a("s_cmp_eq_u32 s13, 1"); a("s_cbranch_scc1 Ldone")
    a(f"s_mul_i32 s22, s7, {WQ_P}")
    if OPT.get("wqpf", 1) == 2:
        a(f"s_add_u32 s22, s22, {CH}"); a(f"s_mov_b32 s23, {3*CH}")
        a("Lwq0:")
        a("s_mov_b32 m0, s23"); a("s_add_u32 s23, s23, 2048")
        for j in range(2): a(f"buffer_load_dwordx4 v4, {WS}, s22 offen offset:{j*1024} sc1 lds")
        a("s_add_u32 s22, s22, 2048"); a(f"s_cmp_lt_u32 s23, {4*CH}"); a("s_cbranch_scc1 Lwq0")
    else: a(f"s_add_u32 s22, s22, {2*CH}")
    a("s_mov_b32 s23, 0")
    a("Lwq:")
    a("s_mov_b32 m0, s23"); a("s_add_u32 s23, s23, 2048")
    for j in range(2): a(f"buffer_load_dwordx4 v4, {WS}, s22 offen offset:{j*1024} sc1 lds")
    a("s_add_u32 s22, s22, 2048"); a(f"s_cmp_lt_u32 s23, {KS0}"); a("s_cbranch_scc1 Lwq")
    a("s_barrier")
    if WK: a.ext(wo_first())
    a("Lnext:")
    a(f"s_add_u32 s12, s12, {LBS}"); a("s_add_u32 s13, s13, 1")
    ka_setup(a, not WK)
    if not WK and not OPT.get("wo1", 1): a.ext(wo_first())
    flag_base(a, 31, 0, 1); a("s_lshl_b32 s30, s18, 11"); a("s_add_u32 s31, s31, s30")
    a("v_and_b32 v16, 3, v2"); a("v_min_u32 v16, 2, v16"); a("v_and_b32 v17, 12, v2"); a("v_add_lshl_u32 v16, v16, v17, 7")
    poll(a, 17, 16, 31, OPT.get("slp1", 0))
    ka_body(a, False)
    a("s_branch Lkb")
    a("Lfinal:")
    srd(a, 20, 78, 2048 * 576 * 2)
    a("v_and_b32 v76, 7, v1"); a("v_lshrrev_b32 v77, 3, v1")
    a("v_mul_u32_u24 v8, 1152, v77"); a("v_lshl_add_u32 v8, v76, 4, v8")
    a(f"s_mul_i32 s18, s17, {8*1152}"); a("s_mul_i32 s19, s3, 384"); a("s_add_u32 s18, s18, s19")
    a("v_lshlrev_b32 v9, 5, v76"); a("v_lshl_add_u32 v9, v77, 2, v9")
    for i in range(24): a(f"v_add_f32 v{T+i}, v{T+i}, v10")
    for i in range(12):
        a(f"v_cvt_pk_bf16_f32 v{L+i}, v{T+2*i}, v{T+2*i+1}"); a(f"ds_bpermute_b32 v{L+12+i}, v9, v{L+i}")
    for i in range(3): a(f"buffer_store_dwordx4 {vr(L+12+4*i)}, v8, s[20:23], s18 offen offset:{128*i} sc1")
    a("Ldone:")

def mega():
    G.nlab = 0; G.tail = []
    a = Prog()
    a("s_cmp_ge_u32 s2, 256"); a("s_cbranch_scc1 Lexit")
    a("s_load_dwordx16 s[64:79], s[0:1], 0"); a("s_load_dwordx2 s[4:5], s[0:1], 72")
    if OPT.get("pf0", 1):
        a("s_getpc_b64 s[52:53]"); a("v_and_b32 v1, 0xfc, v0"); a("v_lshlrev_b32 v1, 5, v1")
        a("global_load_dword v255, v1, s[52:53]", "touch")
    a("v_and_b32 v1, 63, v0"); a("v_lshrrev_b32 v2, 6, v0"); a("v_lshlrev_b32 v4, 4, v1"); a("v_readfirstlane_b32 s3, v2")
    a("v_and_b32 v2, 15, v1"); a("v_lshrrev_b32 v3, 4, v1")
    a(f"v_mov_b32 v14, {hx(OOB)}"); a("v_cmp_gt_u32 vcc, 32, v1"); a("v_lshlrev_b32 v13, 2, v1"); a("v_mov_b32 v15, 0"); a("v_cndmask_b32 v13, v14, v13, vcc")
    a(f"s_mov_b32 s12, {LB0}"); a("s_mov_b32 s13, 0"); a("s_and_b32 s14, s2, 7"); a("s_lshr_b32 s15, s2, 3")
    km = OPT.get("kmap", 1)
    a(f"s_lshr_b32 s6, s14, {km}"); a(f"s_lshl_b32 s6, s6, {km+1}"); a(f"s_lshr_b32 s7, s15, {4-km}"); a("s_add_u32 s6, s6, s7")
    a(f"s_and_b32 s7, s14, {(1<<km)-1}"); a(f"s_lshl_b32 s7, s7, {4-km}"); a(f"s_and_b32 s16, s15, {(16>>km)-1}"); a("s_add_u32 s7, s7, s16")
    if DBG: a("s_memrealtime s[100:101]")
    stamp(a, 0)
    p0(a)
    ka_body(a, True)
    a("Lkb:")
    m_kb(a); m_ffn(a); m_kd(a)
    if DBG:
        stamp(a, 20)
        a("s_waitcnt vmcnt(0)"); stamp(a, 21)
        a("s_lshl_b32 s16, s2, 10"); a(f"s_add_u32 s16, s16, {TS}"); a("v_lshlrev_b32 v16, 2, v0")
        a(f"buffer_store_dword v15, v16, {WS}, s16 offen")
        if "ti" in OPT:
            a(f"s_cmp_eq_u32 s2, {OPT.get('twg', 37)}"); a("s_cbranch_scc0 Lexit"); a("s_cmp_eq_u32 s3, 0"); a("s_cbranch_scc0 Lexit")
            a(f"v_readlane_b32 s16, v15, {OPT['ti']}"); a(f"v_readlane_b32 s17, v15, {OPT['tj']}"); a("s_nop 4")
            a("s_sub_u32 s16, s17, s16")
            a("s_lshr_b32 s16, s16, 2") if DBG == 2 else a("s_lshl_b32 s16, s16, 2")
            a("s_add_u32 s16, s16, 15000")
            a("Ltel:"); a("s_memrealtime s[18:19]"); a("s_waitcnt lgkmcnt(0)"); a("s_sub_u32 s18, s18, s100"); a("s_cmp_lt_u32 s18, s16"); a("s_cbranch_scc1 Ltel")
    a("Lexit:"); a("s_endpgm")
    a.ext(G.tail)
    a("Lcode_end:")
    return a

def build(listform):
    m = mega().finalize(True).replace("CODE_LEN", "Lcode_end-Lp0_w3-8")
    o = [f"; @launch {'kernel=' + NAME + ' ' if listform else ''}grid=(256,1,1) block=(256,1,1) lds=163840",
         '.amdgcn_target "amdgcn-amd-amdhsa--gfx950"', ".text", f".globl {NAME}", ".p2align 8", f".type {NAME},@function", NAME + ":", m,
         '.section .rodata,"a"', ".p2align 6", kernel_desc(NAME, 512, 256, 102)]
    return "\n".join(o) + "\n"
if __name__ == "__main__":
    HEADER = open("interleave_layers__linear_attn_block__glu_gated_geglu__prompt.s.ref").read().split("; Override")[0]
    name = "m2"
    for arg in sys.argv[1:]:
        if "=" in arg:
            k, v = arg.split("="); OPT[k] = int(v)
        else: name = arg
    COST["vmem"] = OPT.get("cv", 1); COST["ds"] = OPT.get("cd", 1)
    t = build(True)
    open(name + ".s", "w").write(HEADER + t)
    open(name + "_final.s", "w").write(HEADER + t.replace("kernel=" + NAME + " ", ""))
    DBG = True
    open(name + "_st.s", "w").write(build(True))
    DBG = 2
    open(name + "_ck.s", "w").write(build(True))
```
